```python
import torch

def _softmax(x, axis=-1):
    return torch.softmax(x, dim=axis)
def _gelu(x):
    return torch.nn.functional.gelu(x, approximate="tanh")
def _silu(x):
    return torch.nn.functional.silu(x)
def _sigmoid(x):
    return torch.sigmoid(x)
def _layernorm(x, axis=-1, eps=1e-5):
    m = x.mean(dim=axis, keepdim=True)
    v = x.var(dim=axis, keepdim=True, unbiased=False)
    return (x - m) / torch.sqrt(v + eps)
def _scatter_add(tgt, idx, src, axis=0):
    return tgt.clone().index_add_(axis, idx, src)
def _segment_sum(src, seg, n):
    out = torch.zeros((n,) + src.shape[1:], dtype=src.dtype)
    return out.index_add_(0, seg, src)
def _pad(x, pw):
    flat = tuple(v for pair in reversed(pw) for v in pair)
    return torch.nn.functional.pad(x, flat)

kernel_name = 'standalone__edge_featured_mpnn_gatedgcn__graph'

def setup_inputs():

    _w = (lambda a: (lambda t: t.to(torch.bfloat16) if t.is_floating_point() else t)(torch.as_tensor(a)))
    N, deg, D, De = 25000, 32, 64, max(16, 1)
    E = N * deg
    return {
        "x": _w((lambda *s: torch.randn(*s, dtype=torch.bfloat16) * 0.8)(N, D)),
        "e_attr": _w((lambda *s: torch.randn(*s, dtype=torch.bfloat16) * 0.8)(E, De)),
        "src": _w((lambda lo, hi, *s: torch.randint(lo, hi, s))(0, N, E).to(torch.int64)),
        "dst": _w((lambda lo, hi, *s: torch.randint(lo, hi, s))(0, N, E).to(torch.int64)),
        "w_a": _w((lambda *s: torch.randn(*s, dtype=torch.bfloat16) * 0.8)(D, D)),
        "w_b": _w((lambda *s: torch.randn(*s, dtype=torch.bfloat16) * 0.8)(D, D)),
        "w_c": _w((lambda *s: torch.randn(*s, dtype=torch.bfloat16) * 0.8)(De, D)),
        "w_u": _w((lambda *s: torch.randn(*s, dtype=torch.bfloat16) * 0.05)(D, D)),
        "w_v": _w((lambda *s: torch.randn(*s, dtype=torch.bfloat16) * 0.05)(D, D)),
    }

def reference(x, e_attr, src, dst, w_a, w_b, w_c, w_u, w_v):
    N, D = x.shape
    hv = x @ w_v
    g = x[dst] @ w_a + x[src] @ w_b + e_attr @ w_c
    eta = _sigmoid(g)
    denom = _segment_sum(eta, dst, N) + 1e-6
    eta_n = eta / denom[dst]
    agg = _segment_sum(eta_n * hv[src], dst, N)
    z = x @ w_u + agg
    relu_z = torch.where(z > 0, z, 0 * z)
    return x + relu_z
```

```python
import sys, re

N = 25000; E = 800000; NB = 98; NBK = 256; CH = 3125
MAIN = "standalone__edge_featured_mpnn_gatedgcn__graph_kernel"
PART = "gcn_part_kernel"

WS_REC = 0
WS_OFF = E * 8
WS_FRAG = WS_OFF + 257 * 256 * 4
WS_SIZE = 0x10000000

L = []
def o(s):
    m = re.match(r"(ds_\w+) (.*) offset:(\d+)$", s)
    if m and int(m.group(3)) > 65535:
        op, args, off = m.group(1), m.group(2), int(m.group(3))
        parts = [p.strip() for p in args.split(",")]
        ai = 1 if op.startswith("ds_read") or op.endswith("rtn_u32") else 0
        hi = off & ~0xfff
        L.append(f"    v_add_u32 v63, {hi}, {parts[ai]}")
        parts[ai] = "v63"
        L.append(f"    {op} {', '.join(parts)} offset:{off - hi}")
        return
    if s.startswith("v_readfirstlane") or s.startswith("v_readlane"):
        L.append("    s_nop 0")
    if s.startswith("v_cndmask"):
        L.append("    s_nop 1")
    L.append("    " + s)
def lab(s): L.append(s + ":")

def srd(d, b, size):
    o(f"s_mov_b32 s{d}, s{b}")
    o(f"s_mov_b32 s{d+1}, s{b+1}")
    o(f"s_mov_b32 s{d+2}, {size}")
    o(f"s_mov_b32 s{d+3}, 0x00020000")

def wave_scan(vi):
    o("s_nop 1")
    for sh in (1, 2, 4, 8):
        o(f"v_add_u32_dpp v{vi}, v{vi}, v{vi} row_shr:{sh} row_mask:0xf bank_mask:0xf bound_ctrl:0")
        o("s_nop 1")
    o(f"v_add_u32_dpp v{vi}, v{vi}, v{vi} row_bcast:15 row_mask:0xa bank_mask:0xf")
    o("s_nop 1")
    o(f"v_add_u32_dpp v{vi}, v{vi}, v{vi} row_bcast:31 row_mask:0xc bank_mask:0xf")
    o("s_nop 1")

def scan256(vin, vex, vt, lds_sc, swave, st, nbar_waves_extra=False):
    o(f"v_mov_b32 v{vex}, v{vin}")
    wave_scan(vex)
    o(f"v_readlane_b32 s{st}, v{vex}, 63")
    o(f"v_mov_b32 v{vt}, s{swave}")
    o(f"v_lshlrev_b32 v{vt}, 2, v{vt}")
    o(f"v_mov_b32 v{vt+1}, s{st}")
    o(f"ds_write_b32 v{vt}, v{vt+1} offset:{lds_sc}")
    o("s_waitcnt lgkmcnt(0)")
    o("s_barrier")
    o(f"v_mov_b32 v{vt}, 0")
    o(f"ds_read_b128 v[{vt}:{vt+3}], v{vt} offset:{lds_sc}")
    o("s_waitcnt lgkmcnt(0)")
    for k in range(3):
        o(f"v_readfirstlane_b32 s{st+1+k}, v{vt+k}")
    o(f"s_mov_b32 s{st}, 0")
    for k in range(3):
        o(f"s_cmp_gt_u32 s{swave}, {k}")
        o(f"s_cselect_b32 s{st+4}, s{st+1+k}, 0")
        o(f"s_add_u32 s{st}, s{st}, s{st+4}")
    o(f"v_sub_u32 v{vex}, v{vex}, v{vin}")
    o(f"v_add_u32 v{vex}, s{st}, v{vex}")

def gen_part():
    A_HIST = 0; A_OFFS = 1024; A_SC = 2048; A_STAGE = 2304
    lab(PART)
    o("s_load_dwordx2 s[4:5], s[0:1], 16")
    o("s_load_dwordx2 s[6:7], s[0:1], 24")
    o("s_load_dwordx2 s[8:9], s[0:1], 88")
    o(f"s_cmp_ge_u32 s2, {NBK}")
    o("s_cbranch_scc1 A_frag")
    o("s_waitcnt lgkmcnt(0)")
    srd(12, 4, E * 4)
    srd(16, 6, E * 4)
    srd(20, 8, WS_SIZE)
    o(f"s_mul_i32 s3, s2, {CH*4}")
    o("v_lshlrev_b32 v1, 2, v0")
    o("v_lshrrev_b32 v2, 6, v0")
    o("v_readfirstlane_b32 s26, v2")
    D0, S0, B0, R0 = 10, 23, 36, 49
    for i in range(13):
        o(f"s_add_u32 s33, s3, {i*1024}")
        o(f"buffer_load_dword v{D0+i}, v1, s[16:19], s33 offen")
    for i in range(13):
        o(f"s_add_u32 s33, s3, {i*1024}")
        o(f"buffer_load_dword v{S0+i}, v1, s[12:15], s33 offen")
    o("v_mov_b32 v3, 0")
    o(f"ds_write_b32 v1, v3 offset:{A_HIST}")
    o(f"v_cmp_gt_u32 s[24:25], {CH - 12*256}, v0")
    o("v_mov_b32 v4, 1")
    o("s_waitcnt lgkmcnt(0)")
    o("s_barrier")
    for i in range(13):
        o(f"s_waitcnt vmcnt({25-i})")
        o(f"v_mul_u32_u24 v{B0+i}, 0x29cc, v{D0+i}")
        o(f"v_lshrrev_b32 v{B0+i}, 20, v{B0+i}")
        o(f"v_lshlrev_b32 v{B0+i}, 2, v{B0+i}")
        if i == 12:
            o("s_mov_b64 exec, s[24:25]")
        o(f"ds_add_rtn_u32 v{R0+i}, v{B0+i}, v4 offset:{A_HIST}")
        if i == 12:
            o("s_mov_b64 exec, -1")
    o("s_waitcnt lgkmcnt(0)")
    o("s_barrier")
    o(f"ds_read_b32 v5, v1 offset:{A_HIST}")
    o("s_waitcnt lgkmcnt(0)")
    scan256(5, 6, 64, A_SC, 26, 27)
    o(f"ds_write_b32 v1, v6 offset:{A_OFFS}")
    o(f"v_lshlrev_b32 v7, 10, v0")
    o(f"s_lshl_b32 s27, s2, 2")
    o(f"s_add_u32 s27, s27, {WS_OFF}")
    o(f"buffer_store_dword v6, v7, s[20:23], s27 offen")
    o(f"v_mov_b32 v8, {CH}")
    o(f"v_mov_b32 v9, {256*1024}")
    o("v_cmp_eq_u32 vcc, 0, v0")
    o("s_and_saveexec_b64 s[28:29], vcc")
    o(f"buffer_store_dword v8, v9, s[20:23], s27 offen")
    o("s_mov_b64 exec, -1")
    o("s_waitcnt lgkmcnt(0)")
    o("s_barrier")
    o("s_waitcnt vmcnt(0)")
    for i in range(13):
        o(f"ds_read_b32 v{64+i}, v{B0+i} offset:{A_OFFS}")
    o(f"s_mul_i32 s30, s2, {CH}")
    for i in range(13):
        o(f"s_waitcnt lgkmcnt({12-i})")
        o(f"v_add_u32 v{64+i}, v{64+i}, v{R0+i}")
        o(f"v_lshlrev_b32 v{64+i}, 3, v{64+i}")
        o(f"v_mul_u32_u24 v2, {NB//2}, v{B0+i}")
        o(f"v_lshrrev_b32 v2, 1, v2")
        o(f"v_sub_u32 v2, v{D0+i}, v2")
        o(f"v_lshlrev_b32 v2, 24, v2")
        o(f"v_add_u32 v3, {i*256}, v0")
        o(f"v_add_u32 v3, s30, v3")
        o(f"v_or_b32 v{D0+i}, v2, v3")
        if i == 12:
            o("s_mov_b64 exec, s[24:25]")
        o(f"v_mov_b32 v2, v{D0+i}")
        o(f"v_mov_b32 v3, v{S0+i}")
        o(f"ds_write_b64 v{64+i}, v[2:3] offset:{A_STAGE}")
        if i == 12:
            o("s_mov_b64 exec, -1")
    o("s_waitcnt lgkmcnt(0)")
    o("s_barrier")
    o("v_lshlrev_b32 v1, 3, v0")
    for i in range(13):
        o(f"ds_read_b64 v[{64+2*i}:{65+2*i}], v1 offset:{A_STAGE + i*2048}")
    o(f"s_mul_i32 s31, s2, {CH*8}")
    for i in range(13):
        o(f"s_waitcnt lgkmcnt({12-i})")
        if i == 12:
            o("s_mov_b64 exec, s[24:25]")
        o(f"s_add_u32 s32, s31, {i*2048}")
        o(f"buffer_store_dwordx2 v[{64+2*i}:{65+2*i}], v1, s[20:23], s32 offen")
    o("s_endpgm")

    lab("A_frag")
    o(f"s_sub_u32 s3, s2, {NBK}")
    o("v_lshrrev_b32 v2, 6, v0")
    o("v_readfirstlane_b32 s26, v2")
    o("s_lshl_b32 s3, s3, 2")
    o("s_add_u32 s3, s3, s26")
    o("s_cmp_ge_u32 s3, 36")
    o("s_cbranch_scc1 A_end")
    o("s_load_dwordx2 s[34:35], s[0:1], 32")
    o("s_load_dwordx2 s[36:37], s[0:1], 40")
    o("s_load_dwordx2 s[38:39], s[0:1], 48")
    o("s_load_dwordx2 s[40:41], s[0:1], 56")
    o("s_load_dwordx2 s[42:43], s[0:1], 64")
    o("s_waitcnt lgkmcnt(0)")
    srd(20, 8, WS_SIZE)
    o("s_mov_b64 s[44:45], s[36:37]")
    o("s_mov_b32 s27, s3")
    o("s_cmp_ge_u32 s3, 8")
    o("s_cselect_b64 s[44:45], s[42:43], s[44:45]")
    o("s_cselect_b32 s28, 8, 0")
    o("s_sub_u32 s27, s3, s28")
    o("s_cmp_ge_u32 s3, 16")
    o("s_cselect_b64 s[44:45], s[38:39], s[44:45]")
    o("s_cselect_b32 s28, 16, s28")
    o("s_sub_u32 s27, s3, s28")
    o("s_cmp_ge_u32 s3, 20")
    o("s_cselect_b64 s[44:45], s[34:35], s[44:45]")
    o("s_cselect_b32 s28, 20, s28")
    o("s_sub_u32 s27, s3, s28")
    o("s_cmp_ge_u32 s3, 28")
    o("s_cselect_b64 s[44:45], s[40:41], s[44:45]")
    o("s_cselect_b32 s28, 28, s28")
    o("s_sub_u32 s27, s3, s28")
    srd(12, 44, 64 * 64 * 2)
    o("v_and_b32 v1, 63, v0")
    o("v_and_b32 v2, 15, v1")
    o("v_lshrrev_b32 v3, 4, v1")
    o("s_lshl_b32 s29, s3, 10")
    o(f"s_add_u32 s29, s29, {WS_FRAG}")
    o("v_lshlrev_b32 v4, 4, v1")
    o("s_cmp_eq_u32 s28, 16")
    o("s_cbranch_scc1 A_fragc")
    o("s_lshr_b32 s30, s27, 1")
    o("s_and_b32 s31, s27, 1")
    o("s_lshl_b32 s30, s30, 5")
    o("s_lshl_b32 s31, s31, 12")
    o("s_add_u32 s30, s30, s31")
    o("v_lshlrev_b32 v5, 10, v3")
    o("v_lshl_add_u32 v5, v2, 1, v5")
    for j in range(8):
        o(f"buffer_load_ushort v{8+j}, v5, s[12:15], s30 offen offset:{j*128}")
    o("s_waitcnt vmcnt(0)")
    for j in range(4):
        o(f"v_lshl_or_b32 v{16+j}, v{9+2*j}, 16, v{8+2*j}")
    o("buffer_store_dwordx4 v[16:19], v4, s[20:23], s29 offen")
    o("s_endpgm")
    lab("A_fragc")
    o("s_lshl_b32 s30, s27, 5")
    o("v_lshlrev_b32 v5, 9, v3")
    o("v_lshl_add_u32 v5, v2, 1, v5")
    for j in range(4):
        o(f"buffer_load_ushort v{8+j}, v5, s[12:15], s30 offen offset:{j*128}")
    o("s_waitcnt vmcnt(0)")
    for j in range(2):
        o(f"v_lshl_or_b32 v{16+j}, v{9+2*j}, 16, v{8+2*j}")
    o("v_lshlrev_b32 v4, 3, v1")
    o("buffer_store_dwordx2 v[16:17], v4, s[20:23], s29 offen")
    lab("A_end")
    o("s_endpgm")

CAP = 4096
C_REC = 0
C_ACC = C_REC + CAP * 8
C_XA = C_ACC + 112 * 512
C_XU = C_XA + 112 * 256
C_CNT = C_XU + 112 * 256
C_NOFF = C_CNT + 512
C_SC = C_NOFF + 512
C_TL = C_SC + 256
TLN = 384
C_LDS = C_TL + 8 * TLN * 4
WF = 64
SLOT = [136, 148, 160]
DG, DH, DEN, NUM, CXA = 172, 188, 204, 220, 236

def frag_load(first, cnt, dst):
    for k in range(cnt):
        o(f"s_add_u32 s40, s39, {(first+k)*1024}")
        o(f"buffer_load_dwordx4 v[{dst+4*k}:{dst+4*k+3}], v4, s[16:19], s40 offen")

def gen_main():
    lab(MAIN)
    o("s_load_dwordx2 s[4:5], s[0:1], 0")
    o("s_load_dwordx2 s[6:7], s[0:1], 8")
    o("s_load_dwordx2 s[8:9], s[0:1], 88")
    o("s_load_dwordx2 s[10:11], s[0:1], 72")
    o(f"s_cmp_ge_u32 s2, {NBK}")
    o("s_cbranch_scc1 C_end")
    o("s_waitcnt lgkmcnt(0)")
    srd(12, 4, N * 128)
    srd(24, 6, E * 32)
    srd(16, 8, WS_SIZE)
    srd(20, 10, N * 128)
    o(f"s_mul_i32 s3, s2, {NB}")
    o("v_and_b32 v3, 63, v0")
    o("v_and_b32 v1, 15, v0")
    o("v_bfe_u32 v2, v0, 4, 2")
    o("v_lshrrev_b32 v5, 6, v0")
    o("v_readfirstlane_b32 s38, v5")
    o("v_lshlrev_b32 v4, 4, v3")
    o(f"s_mov_b32 s39, {WS_FRAG}")
    o("s_cmp_ge_u32 s38, 7")
    o("s_cbranch_scc1 C_p0b")
    frag_load(20, 16, WF)
    o("s_lshl_b32 s41, s38, 4")
    o("s_add_u32 s41, s41, s3")
    o("v_add_u32 v6, s41, v1")
    o("v_lshlrev_b32 v6, 7, v6")
    o("v_lshl_add_u32 v6, v2, 4, v6")
    o("buffer_load_dwordx4 v[8:11], v6, s[12:15], 0 offen")
    o("buffer_load_dwordx4 v[12:15], v6, s[12:15], 0 offen offset:64")
    o("s_waitcnt vmcnt(0)")
    for nt in range(8):
        o(f"v_mfma_f32_16x16x32_bf16 v[{16+4*nt}:{19+4*nt}], v[8:11], v[{WF+8*nt}:{WF+8*nt+3}], 0")
    for nt in range(8):
        o(f"v_mfma_f32_16x16x32_bf16 v[{16+4*nt}:{19+4*nt}], v[12:15], v[{WF+8*nt+4}:{WF+8*nt+7}], v[{16+4*nt}:{19+4*nt}]")
    o("s_nop 7")
    o("s_nop 7")
    o("v_lshlrev_b32 v6, 10, v2")
    o("v_lshl_add_u32 v6, v1, 2, v6")
    o("s_lshl_b32 s41, s38, 12")
    o("v_add_u32 v6, s41, v6")
    for nt in range(8):
        base = C_XA if nt < 4 else C_XU
        for r in range(0, 4, 2):
            a = 16 + 4 * nt + r
            o(f"v_cvt_pk_bf16_f32 v7, v{a}, v{a+1}")
            o(f"v_lshlrev_b32 v{a}, 16, v7")
            o(f"v_and_b32 v{a+1}, 0xffff0000, v7")
            o(f"ds_write_b32 v6, v{a} offset:{base + (nt%4)*64 + r*256}")
            o(f"ds_write_b32 v6, v{a+1} offset:{base + (nt%4)*64 + (r+1)*256}")
    lab("C_p0b")
    frag_load(0, 16, WF)
    o("v_lshlrev_b32 v5, 3, v3")
    for k in range(4):
        o(f"s_add_u32 s40, s39, {(16+k)*1024}")
        o(f"buffer_load_dwordx2 v[{WF+64+2*k}:{WF+64+2*k+1}], v5, s[16:19], s40 offen")
    o("v_mov_b32 v8, 0")
    o("v_mov_b32 v9, 0")
    o("v_mov_b32 v10, 0")
    o("v_mov_b32 v11, 0")
    o("v_lshlrev_b32 v6, 4, v0")
    for k in range(7):
        o(f"ds_write_b128 v6, v[8:11] offset:{C_ACC + k*8192}")
    o("v_lshlrev_b32 v6, 2, v0")
    o("s_lshl_b32 s41, s2, 10")
    o(f"s_add_u32 s41, s41, {WS_OFF}")
    o("s_cmp_ge_u32 s38, 4")
    o("s_cbranch_scc1 C_p0c")
    o("buffer_load_dword v20, v6, s[16:19], s41 offen")
    o("buffer_load_dword v21, v6, s[16:19], s41 offen offset:1024")
    o("s_waitcnt vmcnt(0)")
    o("v_sub_u32 v21, v21, v20")
    lab("C_p0c")
    o("s_cmp_ge_u32 s38, 4")
    o("s_cbranch_scc0 C_p0d")
    o("v_mov_b32 v20, 0")
    o("v_mov_b32 v21, 0")
    lab("C_p0d")
    scan256(21, 22, 24, C_SC, 38, 42)
    o("v_mov_b32 v24, 0")
    o(f"ds_read_b128 v[24:27], v24 offset:{C_SC}")
    o("s_waitcnt lgkmcnt(0)")
    o("v_add_u32 v24, v24, v25")
    o("v_add_u32 v26, v26, v27")
    o("v_add_u32 v24, v24, v26")
    o("v_readfirstlane_b32 s47, v24")
    o(f"v_mul_u32_u24 v23, {CH*8}, v0")
    o("v_lshl_add_u32 v23, v20, 3, v23")
    o("s_mov_b32 s48, 0")
    lab("C_round")
    o("s_cmp_ge_u32 s38, 4")
    o("s_cbranch_scc1 C_cp_done")
    o("v_mov_b32 v28, 0")
    lab("C_cp_loop")
    o("v_cmp_lt_u32 vcc, v28, v21")
    o("s_cbranch_vccz C_cp_done")
    for u in range(4):
        o(f"v_add_u32 v{30+u}, {u}, v28")
        o(f"v_cmp_lt_u32 s[{50+2*u}:{51+2*u}], v{30+u}, v21")
        o(f"v_add_u32 v{30+u}, v{30+u}, v22")
        o(f"v_subrev_u32 v{30+u}, s48, v{30+u}")
        o(f"v_cmp_gt_u32 vcc, {CAP}, v{30+u}")
        o(f"s_and_b64 s[{50+2*u}:{51+2*u}], s[{50+2*u}:{51+2*u}], vcc")
        o(f"v_lshlrev_b32 v{30+u}, 3, v{30+u}")
        o(f"v_lshl_add_u32 v29, v28, 3, v23")
        o(f"s_mov_b64 exec, s[{50+2*u}:{51+2*u}]")
        o(f"buffer_load_dwordx2 v[{36+2*u}:{37+2*u}], v29, s[16:19], 0 offen offset:{8*u}")
        o("s_mov_b64 exec, -1")
    for u in range(4):
        o(f"s_waitcnt vmcnt({3-u})")
        o(f"s_mov_b64 exec, s[{50+2*u}:{51+2*u}]")
        o(f"ds_write_b64 v{30+u}, v[{36+2*u}:{37+2*u}] offset:{C_REC}")
        o("s_mov_b64 exec, -1")
    o("v_add_u32 v28, 4, v28")
    o("s_branch C_cp_loop")
    lab("C_cp_done")
    o("v_lshlrev_b32 v6, 2, v0")
    o("v_mov_b32 v7, 0")
    o("v_cmp_gt_u32 vcc, 128, v0")
    o("s_and_saveexec_b64 s[50:51], vcc")
    o(f"ds_write_b32 v6, v7 offset:{C_CNT}")
    o("s_mov_b64 exec, -1")
    o("s_waitcnt vmcnt(0) lgkmcnt(0)")
    o("s_barrier")
    o("s_sub_u32 s49, s47, s48")
    o(f"s_min_u32 s49, s49, {CAP}")
    o("v_lshlrev_b32 v6, 3, v0")
    o("v_mov_b32 v7, 1")
    for k in range(8):
        o(f"v_add_u32 v5, {512*k}, v0")
        o(f"v_cmp_gt_u32 s[{50+2*k}:{51+2*k}], s49, v5")
        o(f"s_mov_b64 exec, s[{50+2*k}:{51+2*k}]")
        o(f"ds_read_b64 v[{28+2*k}:{29+2*k}], v6 offset:{C_REC + 4096*k}")
        o("s_mov_b64 exec, -1")
    o("s_waitcnt lgkmcnt(0)")
    for k in range(8):
        o(f"v_lshrrev_b32 v5, 24, v{28+2*k}")
        o("v_lshlrev_b32 v5, 2, v5")
        o(f"s_mov_b64 exec, s[{50+2*k}:{51+2*k}]")
        o(f"ds_add_rtn_u32 v{44+k}, v5, v7 offset:{C_CNT}")
        o("s_mov_b64 exec, -1")
    o("s_waitcnt lgkmcnt(0)")
    o("s_barrier")
    o("s_cmp_lg_u32 s38, 0")
    o("s_cbranch_scc1 C_scan_done")
    o("v_lshlrev_b32 v6, 3, v0")
    o(f"ds_read_b64 v[8:9], v6 offset:{C_CNT}")
    o("s_waitcnt lgkmcnt(0)")
    o("v_add_u32 v10, v8, v9")
    o("v_mov_b32 v12, v10")
    wave_scan(12)
    o("v_sub_u32 v12, v12, v10")
    o("v_add_u32 v13, v12, v8")
    o(f"ds_write_b64 v6, v[12:13] offset:{C_NOFF}")
    o("s_waitcnt lgkmcnt(0)")
    lab("C_scan_done")
    o("s_barrier")
    for k in range(8):
        o(f"v_lshrrev_b32 v5, 24, v{28+2*k}")
        o("v_lshlrev_b32 v5, 2, v5")
        o(f"s_mov_b64 exec, s[{50+2*k}:{51+2*k}]")
        o(f"ds_read_b32 v{52+k}, v5 offset:{C_NOFF}")
        o("s_mov_b64 exec, -1")
    o("s_waitcnt lgkmcnt(0)")
    for k in range(8):
        o(f"v_add_u32 v5, v{52+k}, v{44+k}")
        o("v_lshlrev_b32 v5, 3, v5")
        o(f"s_mov_b64 exec, s[{50+2*k}:{51+2*k}]")
        o(f"ds_write_b64 v5, v[{28+2*k}:{29+2*k}] offset:{C_REC}")
        o("s_mov_b64 exec, -1")
    o("s_waitcnt lgkmcnt(0)")
    o("s_barrier")
    o("v_lshlrev_b32 v5, 3, v3")
    o("v_add_u32 v5, s38, v5")
    o(f"v_cmp_gt_u32 vcc, {NB}, v5")
    o("v_lshlrev_b32 v6, 2, v5")
    o("v_min_u32 v6, 508, v6")
    o(f"ds_read_b32 v8, v6 offset:{C_NOFF}")
    o(f"ds_read_b32 v9, v6 offset:{C_CNT}")
    o("s_waitcnt lgkmcnt(0)")
    o("v_cndmask_b32 v9, 0, v9, vcc")
    o("v_add_u32 v10, 15, v9")
    o("v_lshrrev_b32 v10, 4, v10")
    o("v_mov_b32 v11, v10")
    wave_scan(11)
    o("v_readlane_b32 s44, v11, 63")
    o("v_sub_u32 v11, v11, v10")
    o(f"s_mul_i32 s45, s38, {TLN*4}")
    o(f"s_add_u32 s45, s45, {C_TL}")
    o("v_lshlrev_b32 v11, 2, v11")
    o("v_add_u32 v11, s45, v11")
    o("v_mov_b32 v12, 0")
    o("v_lshlrev_b32 v13, 17, v5")
    lab("C_tl_loop")
    o("v_cmp_lt_u32 vcc, v12, v10")
    o("s_cbranch_vccz C_tl_done")
    o("s_and_saveexec_b64 s[50:51], vcc")
    o("v_lshlrev_b32 v14, 4, v12")
    o("v_sub_u32 v15, v9, v14")
    o("v_min_u32 v15, 16, v15")
    o("v_add_u32 v14, v14, v8")
    o("v_lshl_or_b32 v14, v15, 12, v14")
    o("v_or_b32 v14, v14, v13")
    o("v_cmp_eq_u32 vcc, 0, v12")
    o("v_cndmask_b32 v15, 0, 1, vcc")
    o("v_lshl_or_b32 v14, v15, 24, v14")
    o("v_add_u32 v15, 1, v12")
    o("v_cmp_eq_u32 vcc, v15, v10")
    o("v_cndmask_b32 v15, 0, 1, vcc")
    o("v_lshl_or_b32 v14, v15, 25, v14")
    o("ds_write_b32 v11, v14")
    o("v_add_u32 v11, 4, v11")
    o("v_add_u32 v12, 1, v12")
    o("s_mov_b64 exec, -1")
    o("s_branch C_tl_loop")
    lab("C_tl_done")
    o("s_waitcnt lgkmcnt(0)")
    for r in range(4):
        o(f"v_lshl_add_u32 v{16+r}, v2, 2, {r}")
    o(f"v_lshlrev_b32 v20, 2, v1")
    o(f"v_add_u32 v20, {C_XA}, v20")
    o(f"v_lshlrev_b32 v21, 2, v1")
    o(f"v_add_u32 v21, {C_ACC}, v21")
    o("v_lshlrev_b32 v22, 4, v2")
    o("v_lshlrev_b32 v23, 3, v2")
    o("v_mov_b32 v24, s45")
    for k in range(16):
        o(f"v_mov_b32 v{DEN+k}, 0")
        o(f"v_mov_b32 v{NUM+k}, 0")
    o("s_cmp_eq_u32 s44, 0")
    o("s_cbranch_scc1 C_loop_end")
    o("ds_read_b32 v25, v24")
    o("v_add_u32 v24, 4, v24")
    o("s_mov_b32 s46, 0")

    def prefetch(slot):
        b = SLOT[slot]
        o("s_waitcnt lgkmcnt(0)")
        o("v_readfirstlane_b32 s62, v25")
        o("ds_read_b32 v25, v24")
        o("v_add_u32 v24, 4, v24")
        o("s_bfe_u32 s63, s62, 0x5000c")
        o("s_and_b32 s64, s62, 0xfff")
        o("s_sub_u32 s63, s63, 1")
        o("v_min_u32 v26, s63, v1")
        o("v_add_u32 v26, s64, v26")
        o("v_lshlrev_b32 v26, 3, v26")
        o(f"ds_read_b64 v[26:27], v26 offset:{C_REC}")
        o("s_waitcnt lgkmcnt(0)")
        o("v_lshl_add_u32 v27, v27, 7, v22")
        o("v_and_b32 v26, 0xfffff, v26")
        o("v_lshl_add_u32 v26, v26, 5, v23")
        o(f"buffer_load_dwordx4 v[{b}:{b+3}], v27, s[12:15], 0 offen")
        o(f"buffer_load_dwordx4 v[{b+4}:{b+7}], v27, s[12:15], 0 offen offset:64")
        o(f"buffer_load_dwordx2 v[{b+8}:{b+9}], v26, s[24:27], 0 offen")

    cnt_lbl = [0]
    def compute(slot):
        b = SLOT[slot]
        u = cnt_lbl[0]; cnt_lbl[0] += 1
        o("s_bitcmp1_b32 s60, 24")
        o(f"s_cbranch_scc0 C_nf{u}")
        o("s_bfe_u32 s65, s60, 0x70011")
        o("s_lshl_b32 s65, s65, 8")
        o("v_add_u32 v28, s65, v20")
        for nt in range(4):
            for r in range(4):
                o(f"ds_read_b32 v{CXA+4*nt+r}, v28 offset:{64*nt}")
        o("s_waitcnt lgkmcnt(0)")
        lab(f"C_nf{u}")
        o("s_bfe_u32 s66, s60, 0x5000c")
        for r in range(4):
            o(f"v_cmp_gt_u32 s[{50+2*r}:{51+2*r}], s66, v{16+r}")
        o("s_waitcnt vmcnt(6)")
        for nt in range(4):
            o(f"v_mfma_f32_16x16x16_bf16 v[{DG+4*nt}:{DG+4*nt+3}], v[{b+8}:{b+9}], v[{WF+64+2*nt}:{WF+64+2*nt+1}], v[{CXA+4*nt}:{CXA+4*nt+3}]")
        for nt in range(4):
            o(f"v_mfma_f32_16x16x32_bf16 v[{DH+4*nt}:{DH+4*nt+3}], v[{b}:{b+3}], v[{WF+32+8*nt}:{WF+32+8*nt+3}], 0")
        for nt in range(4):
            o(f"v_mfma_f32_16x16x32_bf16 v[{DG+4*nt}:{DG+4*nt+3}], v[{b}:{b+3}], v[{WF+8*nt}:{WF+8*nt+3}], v[{DG+4*nt}:{DG+4*nt+3}]")
        for nt in range(4):
            o(f"v_mfma_f32_16x16x32_bf16 v[{DH+4*nt}:{DH+4*nt+3}], v[{b+4}:{b+7}], v[{WF+32+8*nt+4}:{WF+32+8*nt+7}], v[{DH+4*nt}:{DH+4*nt+3}]")
        for nt in range(4):
            o(f"v_mfma_f32_16x16x32_bf16 v[{DG+4*nt}:{DG+4*nt+3}], v[{b+4}:{b+7}], v[{WF+8*nt+4}:{WF+8*nt+7}], v[{DG+4*nt}:{DG+4*nt+3}]")
        o("s_nop 7")
        for k in range(16):
            o(f"v_mul_f32 v{DG+k}, 0xbfb8aa3b, v{DG+k}")
        for k in range(16):
            o(f"v_exp_f32 v{DG+k}, v{DG+k}")
        for k in range(16):
            o(f"v_add_f32 v{DG+k}, 1.0, v{DG+k}")
        for k in range(16):
            o(f"v_rcp_f32 v{DG+k}, v{DG+k}")
        o("s_nop 0")
        for r in range(4):
            o(f"s_mov_b64 exec, s[{50+2*r}:{51+2*r}]")
            for nt in range(4):
                k = 4 * nt + r
                o(f"v_add_f32 v{DEN+k}, v{DEN+k}, v{DG+k}")
                o(f"v_fmac_f32 v{NUM+k}, v{DG+k}, v{DH+k}")
        o("s_mov_b64 exec, -1")
        o("s_bitcmp1_b32 s60, 25")
        o(f"s_cbranch_scc0 C_nl{u}")
        o("s_bfe_u32 s65, s60, 0x70011")
        o("s_lshl_b32 s65, s65, 9")
        o("v_add_u32 v28, s65, v21")
        for nt in range(4):
            for base in (DEN, NUM):
                a = base + 4 * nt
                o(f"v_add_f32 v{a}, v{a}, v{a+1}")
                o(f"v_add_f32 v{a+2}, v{a+2}, v{a+3}")
                o(f"v_add_f32 v{a}, v{a}, v{a+2}")
                o(f"ds_add_f32 v28, v{a} offset:{64*nt + (256 if base == NUM else 0)}")
        o("s_waitcnt lgkmcnt(0)")
        for k in range(16):
            o(f"v_mov_b32 v{DEN+k}, 0")
            o(f"v_mov_b32 v{NUM+k}, 0")
        lab(f"C_nl{u}")

    prefetch(0)
    o("s_mov_b32 s60, s62")
    prefetch(1)
    o("s_mov_b32 s61, s62")
    lab("C_loop")
    for u in range(3):
        prefetch((u + 2) % 3)
        compute(u)
        o("s_mov_b32 s60, s61")
        o("s_mov_b32 s61, s62")
        o("s_add_u32 s46, s46, 1")
        o("s_cmp_ge_u32 s46, s44")
        o("s_cbranch_scc1 C_loop_end")
    o("s_branch C_loop")
    lab("C_loop_end")
    o("s_waitcnt vmcnt(0) lgkmcnt(0)")
    o("s_barrier")
    o(f"s_add_u32 s48, s48, {CAP}")
    o("s_cmp_lt_u32 s48, s47")
    o("s_cbranch_scc1 C_round")
    o("v_mov_b32 v40, 0x358637bd")
    for k in range(7):
        o(f"v_add_u32 v5, {512*k}, v0")
        o("v_lshrrev_b32 v6, 5, v5")
        o("v_and_b32 v7, 31, v5")
        o("v_add_u32 v8, s3, v6")
        o(f"v_cmp_gt_u32 vcc, {NB}, v6")
        o(f"s_mov_b32 s54, {N}")
        o("v_cmp_gt_u32 s[50:51], s54, v8")
        o("s_and_b64 vcc, vcc, s[50:51]")
        o("s_and_saveexec_b64 s[52:53], vcc")
        o("v_lshlrev_b32 v9, 9, v6")
        o("v_lshl_add_u32 v9, v7, 3, v9")
        o(f"ds_read_b64 v[10:11], v9 offset:{C_ACC}")
        o(f"ds_read_b64 v[12:13], v9 offset:{C_ACC+256}")
        o("v_lshlrev_b32 v9, 8, v6")
        o("v_lshl_add_u32 v9, v7, 3, v9")
        o(f"ds_read_b64 v[14:15], v9 offset:{C_XU}")
        o("v_lshlrev_b32 v9, 7, v8")
        o("v_lshl_add_u32 v9, v7, 2, v9")
        o("buffer_load_dword v16, v9, s[12:15], 0 offen")
        o("s_waitcnt vmcnt(0) lgkmcnt(0)")
        for h in range(2):
            o(f"v_add_f32 v{10+h}, v40, v{10+h}")
            o(f"v_rcp_f32 v{10+h}, v{10+h}")
            o("s_nop 0")
            o(f"v_fma_f32 v{14+h}, v{12+h}, v{10+h}, v{14+h}")
        o("v_cvt_pk_bf16_f32 v14, v14, v15")
        o("v_lshlrev_b32 v10, 16, v14")
        o("v_and_b32 v11, 0xffff0000, v14")
        o("v_max_f32 v10, 0, v10")
        o("v_max_f32 v11, 0, v11")
        o("v_lshlrev_b32 v12, 16, v16")
        o("v_and_b32 v13, 0xffff0000, v16")
        o("v_add_f32 v10, v10, v12")
        o("v_add_f32 v11, v11, v13")
        o("v_cvt_pk_bf16_f32 v10, v10, v11")
        o("buffer_store_dword v10, v9, s[20:23], 0 offen")
        o("s_mov_b64 exec, -1")
    lab("C_end")
    o("s_endpgm")

def kd(name, vg, sg):
    return f""".amdhsa_kernel {name}
  .amdhsa_next_free_vgpr {vg}
  .amdhsa_next_free_sgpr {sg}
  .amdhsa_accum_offset {vg}
  .amdhsa_group_segment_fixed_size 0
  .amdhsa_kernarg_size 96
  .amdhsa_user_sgpr_count 2
  .amdhsa_user_sgpr_kernarg_segment_ptr 1
  .amdhsa_system_sgpr_workgroup_id_x 1
.end_amdhsa_kernel
"""

def main():
    hdr = open("standalone__edge_featured_mpnn_gatedgcn__graph.s.ref").read().split("\n")
    head = [l for l in hdr if l.startswith(";") and "@launch" not in l and "Override" not in l and "grid=ceil" not in l]
    out = head[:]
    out.append(f"; @launch kernel={PART} grid=({NBK+9},1,1) block=(256,1,1) lds=27392")
    out.append(f"; @launch kernel={MAIN} grid=({NBK},1,1) block=(512,1,1) lds={C_LDS}")
    out.append('.amdgcn_target "amdgcn-amd-amdhsa--gfx950"')
    out.append(".text")
    global L
    for name, fn in ((PART, gen_part), (MAIN, gen_main)):
        L = []
        out.append(f".globl {name}")
        out.append(".p2align 8")
        out.append(f".type {name},@function")
        fn()
        out += L
    out.append('.section .rodata,"a"')
    out.append(".p2align 6")
    out.append(kd(PART, 96, 64))
    out.append(".p2align 6")
    out.append(kd(MAIN, 256, 80))
    open("standalone__edge_featured_mpnn_gatedgcn__graph.s", "w").write("\n".join(out) + "\n")
    print("LDS C:", C_LDS)

main()
```

```python
import sys, re, os
DBG = int(os.environ.get("DBG", "0"))
stamp_n = [0]
def stamp():
    if DBG:
        k = stamp_n[0]; stamp_n[0] += 1
        o("s_waitcnt lgkmcnt(0)")
        o(f"s_memtime s[{70+2*k}:{71+2*k}]")
        o("s_waitcnt lgkmcnt(0)")


N = 25000; E = 800000; NB = 98; NBK = 256; CH = 3125
MAIN = "standalone__edge_featured_mpnn_gatedgcn__graph_kernel"
PART = "gcn_part_kernel"

WS_REC = 0
WS_OFF = E * 8
WS_FRAG = WS_OFF + 257 * 256 * 4
WS_SIZE = 0x10000000

L = []
def o(s):
    m = re.match(r"(ds_\w+) (.*) offset:(\d+)$", s)
    if m and int(m.group(3)) > 65535:
        op, args, off = m.group(1), m.group(2), int(m.group(3))
        parts = [p.strip() for p in args.split(",")]
        ai = 1 if op.startswith("ds_read") or op.endswith("rtn_u32") else 0
        hi = off & ~0xfff
        L.append(f"    v_add_u32 v63, {hi}, {parts[ai]}")
        parts[ai] = "v63"
        L.append(f"    {op} {', '.join(parts)} offset:{off - hi}")
        return
    if s.startswith("v_readfirstlane") or s.startswith("v_readlane"):
        L.append("    s_nop 0")
    if s.startswith("v_cndmask"):
        L.append("    s_nop 1")
    L.append("    " + s)
def lab(s): L.append(s + ":")

def srd(d, b, size):
    o(f"s_mov_b32 s{d}, s{b}")
    o(f"s_mov_b32 s{d+1}, s{b+1}")
    o(f"s_mov_b32 s{d+2}, {size}")
    o(f"s_mov_b32 s{d+3}, 0x00020000")

def wave_scan(vi):
    o("s_nop 1")
    for sh in (1, 2, 4, 8):
        o(f"v_add_u32_dpp v{vi}, v{vi}, v{vi} row_shr:{sh} row_mask:0xf bank_mask:0xf bound_ctrl:0")
        o("s_nop 1")
    o(f"v_add_u32_dpp v{vi}, v{vi}, v{vi} row_bcast:15 row_mask:0xa bank_mask:0xf")
    o("s_nop 1")
    o(f"v_add_u32_dpp v{vi}, v{vi}, v{vi} row_bcast:31 row_mask:0xc bank_mask:0xf")
    o("s_nop 1")

def scan256(vin, vex, vt, lds_sc, swave, st, nbar_waves_extra=False):
    o(f"v_mov_b32 v{vex}, v{vin}")
    wave_scan(vex)
    o(f"v_readlane_b32 s{st}, v{vex}, 63")
    o(f"v_mov_b32 v{vt}, s{swave}")
    o(f"v_lshlrev_b32 v{vt}, 2, v{vt}")
    o(f"v_mov_b32 v{vt+1}, s{st}")
    o(f"ds_write_b32 v{vt}, v{vt+1} offset:{lds_sc}")
    o("s_waitcnt lgkmcnt(0)")
    o("s_barrier")
    o(f"v_mov_b32 v{vt}, 0")
    o(f"ds_read_b128 v[{vt}:{vt+3}], v{vt} offset:{lds_sc}")
    o("s_waitcnt lgkmcnt(0)")
    for k in range(3):
        o(f"v_readfirstlane_b32 s{st+1+k}, v{vt+k}")
    o(f"s_mov_b32 s{st}, 0")
    for k in range(3):
        o(f"s_cmp_gt_u32 s{swave}, {k}")
        o(f"s_cselect_b32 s{st+4}, s{st+1+k}, 0")
        o(f"s_add_u32 s{st}, s{st}, s{st+4}")
    o(f"v_sub_u32 v{vex}, v{vex}, v{vin}")
    o(f"v_add_u32 v{vex}, s{st}, v{vex}")

def gen_part():
    A_HIST = 0; A_OFFS = 1024; A_SC = 2048; A_STAGE = 2304
    lab(PART)
    o("s_load_dwordx2 s[4:5], s[0:1], 16")
    o("s_load_dwordx2 s[6:7], s[0:1], 24")
    o("s_load_dwordx2 s[8:9], s[0:1], 88")
    o(f"s_cmp_ge_u32 s2, {NBK}")
    o("s_cbranch_scc1 A_frag")
    o("s_waitcnt lgkmcnt(0)")
    srd(12, 4, E * 4)
    srd(16, 6, E * 4)
    srd(20, 8, WS_SIZE)
    o(f"s_mul_i32 s3, s2, {CH*4}")
    o("v_lshlrev_b32 v1, 2, v0")
    o("v_lshrrev_b32 v2, 6, v0")
    o("v_readfirstlane_b32 s26, v2")
    D0, S0, B0, R0 = 10, 23, 36, 49
    for i in range(13):
        o(f"s_add_u32 s33, s3, {i*1024}")
        o(f"buffer_load_dword v{D0+i}, v1, s[16:19], s33 offen")
    for i in range(13):
        o(f"s_add_u32 s33, s3, {i*1024}")
        o(f"buffer_load_dword v{S0+i}, v1, s[12:15], s33 offen")
    o("v_mov_b32 v3, 0")
    o(f"ds_write_b32 v1, v3 offset:{A_HIST}")
    o(f"v_cmp_gt_u32 s[24:25], {CH - 12*256}, v0")
    o("v_mov_b32 v4, 1")
    o("s_waitcnt lgkmcnt(0)")
    o("s_barrier")
    for i in range(13):
        o(f"s_waitcnt vmcnt({25-i})")
        o(f"v_mul_u32_u24 v{B0+i}, 0x29cc, v{D0+i}")
        o(f"v_lshrrev_b32 v{B0+i}, 20, v{B0+i}")
        o(f"v_lshlrev_b32 v{B0+i}, 2, v{B0+i}")
        if i == 12:
            o("s_mov_b64 exec, s[24:25]")
        o(f"ds_add_rtn_u32 v{R0+i}, v{B0+i}, v4 offset:{A_HIST}")
        if i == 12:
            o("s_mov_b64 exec, -1")
    o("s_waitcnt lgkmcnt(0)")
    o("s_barrier")
    o(f"ds_read_b32 v5, v1 offset:{A_HIST}")
    o("s_waitcnt lgkmcnt(0)")
    scan256(5, 6, 64, A_SC, 26, 27)
    o(f"ds_write_b32 v1, v6 offset:{A_OFFS}")
    o(f"v_lshlrev_b32 v7, 10, v0")
    o(f"s_lshl_b32 s27, s2, 2")
    o(f"s_add_u32 s27, s27, {WS_OFF}")
    o(f"buffer_store_dword v6, v7, s[20:23], s27 offen")
    o(f"v_mov_b32 v8, {CH}")
    o(f"v_mov_b32 v9, {256*1024}")
    o("v_cmp_eq_u32 vcc, 0, v0")
    o("s_and_saveexec_b64 s[28:29], vcc")
    o(f"buffer_store_dword v8, v9, s[20:23], s27 offen")
    o("s_mov_b64 exec, -1")
    o("s_waitcnt lgkmcnt(0)")
    o("s_barrier")
    o("s_waitcnt vmcnt(0)")
    for i in range(13):
        o(f"ds_read_b32 v{64+i}, v{B0+i} offset:{A_OFFS}")
    o(f"s_mul_i32 s30, s2, {CH}")
    for i in range(13):
        o(f"s_waitcnt lgkmcnt({12-i})")
        o(f"v_add_u32 v{64+i}, v{64+i}, v{R0+i}")
        o(f"v_lshlrev_b32 v{64+i}, 3, v{64+i}")
        o(f"v_mul_u32_u24 v2, {NB//2}, v{B0+i}")
        o(f"v_lshrrev_b32 v2, 1, v2")
        o(f"v_sub_u32 v2, v{D0+i}, v2")
        o(f"v_lshlrev_b32 v2, 24, v2")
        o(f"v_add_u32 v3, {i*256}, v0")
        o(f"v_add_u32 v3, s30, v3")
        o(f"v_or_b32 v{D0+i}, v2, v3")
        if i == 12:
            o("s_mov_b64 exec, s[24:25]")
        o(f"v_mov_b32 v2, v{D0+i}")
        o(f"v_mov_b32 v3, v{S0+i}")
        o(f"ds_write_b64 v{64+i}, v[2:3] offset:{A_STAGE}")
        if i == 12:
            o("s_mov_b64 exec, -1")
    o("s_waitcnt lgkmcnt(0)")
    o("s_barrier")
    o("v_lshlrev_b32 v1, 3, v0")
    for i in range(13):
        o(f"ds_read_b64 v[{64+2*i}:{65+2*i}], v1 offset:{A_STAGE + i*2048}")
    o(f"s_mul_i32 s31, s2, {CH*8}")
    for i in range(13):
        o(f"s_waitcnt lgkmcnt({12-i})")
        if i == 12:
            o("s_mov_b64 exec, s[24:25]")
        o(f"s_add_u32 s32, s31, {i*2048}")
        o(f"buffer_store_dwordx2 v[{64+2*i}:{65+2*i}], v1, s[20:23], s32 offen")
    o("s_endpgm")

    lab("A_frag")
    o(f"s_sub_u32 s3, s2, {NBK}")
    o("v_lshrrev_b32 v2, 6, v0")
    o("v_readfirstlane_b32 s26, v2")
    o("s_lshl_b32 s3, s3, 2")
    o("s_add_u32 s3, s3, s26")
    o("s_cmp_ge_u32 s3, 36")
    o("s_cbranch_scc1 A_end")
    o("s_load_dwordx2 s[34:35], s[0:1], 32")
    o("s_load_dwordx2 s[36:37], s[0:1], 40")
    o("s_load_dwordx2 s[38:39], s[0:1], 48")
    o("s_load_dwordx2 s[40:41], s[0:1], 56")
    o("s_load_dwordx2 s[42:43], s[0:1], 64")
    o("s_waitcnt lgkmcnt(0)")
    srd(20, 8, WS_SIZE)
    o("s_mov_b64 s[44:45], s[36:37]")
    o("s_mov_b32 s27, s3")
    o("s_cmp_ge_u32 s3, 8")
    o("s_cselect_b64 s[44:45], s[42:43], s[44:45]")
    o("s_cselect_b32 s28, 8, 0")
    o("s_sub_u32 s27, s3, s28")
    o("s_cmp_ge_u32 s3, 16")
    o("s_cselect_b64 s[44:45], s[38:39], s[44:45]")
    o("s_cselect_b32 s28, 16, s28")
    o("s_sub_u32 s27, s3, s28")
    o("s_cmp_ge_u32 s3, 20")
    o("s_cselect_b64 s[44:45], s[34:35], s[44:45]")
    o("s_cselect_b32 s28, 20, s28")
    o("s_sub_u32 s27, s3, s28")
    o("s_cmp_ge_u32 s3, 28")
    o("s_cselect_b64 s[44:45], s[40:41], s[44:45]")
    o("s_cselect_b32 s28, 28, s28")
    o("s_sub_u32 s27, s3, s28")
    srd(12, 44, 64 * 64 * 2)
    o("v_and_b32 v1, 63, v0")
    o("v_and_b32 v2, 15, v1")
    o("v_lshrrev_b32 v3, 4, v1")
    o("s_lshl_b32 s29, s3, 10")
    o(f"s_add_u32 s29, s29, {WS_FRAG}")
    o("v_lshlrev_b32 v4, 4, v1")
    o("s_cmp_eq_u32 s28, 16")
    o("s_cbranch_scc1 A_fragc")
    o("s_lshr_b32 s30, s27, 1")
    o("s_and_b32 s31, s27, 1")
    o("s_lshl_b32 s30, s30, 5")
    o("s_lshl_b32 s31, s31, 12")
    o("s_add_u32 s30, s30, s31")
    o("v_lshlrev_b32 v5, 10, v3")
    o("v_lshl_add_u32 v5, v2, 1, v5")
    for j in range(8):
        o(f"buffer_load_ushort v{8+j}, v5, s[12:15], s30 offen offset:{j*128}")
    o("s_waitcnt vmcnt(0)")
    for j in range(4):
        o(f"v_lshl_or_b32 v{16+j}, v{9+2*j}, 16, v{8+2*j}")
    o("buffer_store_dwordx4 v[16:19], v4, s[20:23], s29 offen")
    o("s_endpgm")
    lab("A_fragc")
    o("s_lshl_b32 s30, s27, 5")
    o("v_lshlrev_b32 v5, 9, v3")
    o("v_lshl_add_u32 v5, v2, 1, v5")
    for j in range(4):
        o(f"buffer_load_ushort v{8+j}, v5, s[12:15], s30 offen offset:{j*128}")
    o("s_waitcnt vmcnt(0)")
    for j in range(2):
        o(f"v_lshl_or_b32 v{16+j}, v{9+2*j}, 16, v{8+2*j}")
    o("v_lshlrev_b32 v4, 3, v1")
    o("buffer_store_dwordx2 v[16:17], v4, s[20:23], s29 offen")
    lab("A_end")
    o("s_endpgm")

CAP = 4096
C_REC = 0
C_ACC = C_REC + CAP * 8
C_XA = C_ACC + 112 * 512
C_XU = C_XA + 112 * 256
C_CNT = C_XU + 112 * 256
C_NOFF = C_CNT + 512
C_SC = C_NOFF + 512
C_TL = C_SC + 256
TLN = 384
C_LDS = C_TL + 8 * TLN * 4
WF = 64
SLOT = [136, 148, 160]
DG, DH, DEN, NUM, CXA = 172, 188, 204, 220, 236

def frag_load(first, cnt, dst):
    for k in range(cnt):
        o(f"s_add_u32 s40, s39, {(first+k)*1024}")
        o(f"buffer_load_dwordx4 v[{dst+4*k}:{dst+4*k+3}], v4, s[16:19], s40 offen")

def gen_main():
    lab(MAIN)
    o("s_load_dwordx2 s[4:5], s[0:1], 0")
    o("s_load_dwordx2 s[6:7], s[0:1], 8")
    o("s_load_dwordx2 s[8:9], s[0:1], 88")
    o("s_load_dwordx2 s[10:11], s[0:1], 72")
    o(f"s_cmp_ge_u32 s2, {NBK}")
    o("s_cbranch_scc1 C_end")
    o("s_waitcnt lgkmcnt(0)")
    stamp()
    srd(12, 4, N * 128)
    srd(24, 6, E * 32)
    srd(16, 8, WS_SIZE)
    srd(20, 10, N * 128)
    o(f"s_mul_i32 s3, s2, {NB}")
    o("v_and_b32 v3, 63, v0")
    o("v_and_b32 v1, 15, v0")
    o("v_bfe_u32 v2, v0, 4, 2")
    o("v_lshrrev_b32 v5, 6, v0")
    o("v_readfirstlane_b32 s38, v5")
    o("v_lshlrev_b32 v4, 4, v3")
    o(f"s_mov_b32 s39, {WS_FRAG}")
    o("s_cmp_ge_u32 s38, 7")
    o("s_cbranch_scc1 C_p0b")
    frag_load(20, 16, WF)
    o("s_lshl_b32 s41, s38, 4")
    o("s_add_u32 s41, s41, s3")
    o("v_add_u32 v6, s41, v1")
    o("v_lshlrev_b32 v6, 7, v6")
    o("v_lshl_add_u32 v6, v2, 4, v6")
    o("buffer_load_dwordx4 v[8:11], v6, s[12:15], 0 offen")
    o("buffer_load_dwordx4 v[12:15], v6, s[12:15], 0 offen offset:64")
    o("s_waitcnt vmcnt(0)")
    for nt in range(8):
        o(f"v_mfma_f32_16x16x32_bf16 v[{16+4*nt}:{19+4*nt}], v[8:11], v[{WF+8*nt}:{WF+8*nt+3}], 0")
    for nt in range(8):
        o(f"v_mfma_f32_16x16x32_bf16 v[{16+4*nt}:{19+4*nt}], v[12:15], v[{WF+8*nt+4}:{WF+8*nt+7}], v[{16+4*nt}:{19+4*nt}]")
    o("s_nop 7")
    o("s_nop 7")
    o("v_lshlrev_b32 v6, 10, v2")
    o("v_lshl_add_u32 v6, v1, 2, v6")
    o("s_lshl_b32 s41, s38, 12")
    o("v_add_u32 v6, s41, v6")
    for nt in range(8):
        base = C_XA if nt < 4 else C_XU
        for r in range(0, 4, 2):
            a = 16 + 4 * nt + r
            o(f"v_cvt_pk_bf16_f32 v7, v{a}, v{a+1}")
            o(f"v_lshlrev_b32 v{a}, 16, v7")
            o(f"v_and_b32 v{a+1}, 0xffff0000, v7")
            o(f"ds_write_b32 v6, v{a} offset:{base + (nt%4)*64 + r*256}")
            o(f"ds_write_b32 v6, v{a+1} offset:{base + (nt%4)*64 + (r+1)*256}")
    lab("C_p0b")
    frag_load(0, 16, WF)
    o("v_lshlrev_b32 v5, 3, v3")
    for k in range(4):
        o(f"s_add_u32 s40, s39, {(16+k)*1024}")
        o(f"buffer_load_dwordx2 v[{WF+64+2*k}:{WF+64+2*k+1}], v5, s[16:19], s40 offen")
    o("v_mov_b32 v8, 0")
    o("v_mov_b32 v9, 0")
    o("v_mov_b32 v10, 0")
    o("v_mov_b32 v11, 0")
    o("v_lshlrev_b32 v6, 4, v0")
    for k in range(7):
        o(f"ds_write_b128 v6, v[8:11] offset:{C_ACC + k*8192}")
    o("v_lshlrev_b32 v6, 2, v0")
    o("s_lshl_b32 s41, s2, 10")
    o(f"s_add_u32 s41, s41, {WS_OFF}")
    o("s_cmp_ge_u32 s38, 4")
    o("s_cbranch_scc1 C_p0c")
    o("buffer_load_dword v20, v6, s[16:19], s41 offen")
    o("buffer_load_dword v21, v6, s[16:19], s41 offen offset:1024")
    o("s_waitcnt vmcnt(0)")
    o("v_sub_u32 v21, v21, v20")
    lab("C_p0c")
    o("s_cmp_ge_u32 s38, 4")
    o("s_cbranch_scc0 C_p0d")
    o("v_mov_b32 v20, 0")
    o("v_mov_b32 v21, 0")
    lab("C_p0d")
    scan256(21, 22, 24, C_SC, 38, 42)
    o("v_mov_b32 v24, 0")
    o(f"ds_read_b128 v[24:27], v24 offset:{C_SC}")
    o("s_waitcnt lgkmcnt(0)")
    o("v_add_u32 v24, v24, v25")
    o("v_add_u32 v26, v26, v27")
    o("v_add_u32 v24, v24, v26")
    o("v_readfirstlane_b32 s47, v24")
    o(f"v_mul_u32_u24 v23, {CH*8}, v0")
    o("v_lshl_add_u32 v23, v20, 3, v23")
    o("s_mov_b32 s48, 0")
    stamp()
    lab("C_round")
    o("s_cmp_ge_u32 s38, 4")
    o("s_cbranch_scc1 C_cp_done")
    o("v_mov_b32 v28, 0")
    lab("C_cp_loop")
    o("v_cmp_lt_u32 vcc, v28, v21")
    o("s_cbranch_vccz C_cp_done")
    for u in range(4):
        o(f"v_add_u32 v{30+u}, {u}, v28")
        o(f"v_cmp_lt_u32 s[{50+2*u}:{51+2*u}], v{30+u}, v21")
        o(f"v_add_u32 v{30+u}, v{30+u}, v22")
        o(f"v_subrev_u32 v{30+u}, s48, v{30+u}")
        o(f"v_cmp_gt_u32 vcc, {CAP}, v{30+u}")
        o(f"s_and_b64 s[{50+2*u}:{51+2*u}], s[{50+2*u}:{51+2*u}], vcc")
        o(f"v_lshlrev_b32 v{30+u}, 3, v{30+u}")
        o(f"v_lshl_add_u32 v29, v28, 3, v23")
        o(f"s_mov_b64 exec, s[{50+2*u}:{51+2*u}]")
        o(f"buffer_load_dwordx2 v[{36+2*u}:{37+2*u}], v29, s[16:19], 0 offen offset:{8*u}")
        o("s_mov_b64 exec, -1")
    for u in range(4):
        o(f"s_waitcnt vmcnt({3-u})")
        o(f"s_mov_b64 exec, s[{50+2*u}:{51+2*u}]")
        o(f"ds_write_b64 v{30+u}, v[{36+2*u}:{37+2*u}] offset:{C_REC}")
        o("s_mov_b64 exec, -1")
    o("v_add_u32 v28, 4, v28")
    o("s_branch C_cp_loop")
    lab("C_cp_done")
    stamp()
    o("v_lshlrev_b32 v6, 2, v0")
    o("v_mov_b32 v7, 0")
    o("v_cmp_gt_u32 vcc, 128, v0")
    o("s_and_saveexec_b64 s[50:51], vcc")
    o(f"ds_write_b32 v6, v7 offset:{C_CNT}")
    o("s_mov_b64 exec, -1")
    o("s_waitcnt vmcnt(0) lgkmcnt(0)")
    o("s_barrier")
    o("s_sub_u32 s49, s47, s48")
    o(f"s_min_u32 s49, s49, {CAP}")
    o("v_lshlrev_b32 v6, 3, v0")
    o("v_mov_b32 v7, 1")
    for k in range(8):
        o(f"v_add_u32 v5, {512*k}, v0")
        o(f"v_cmp_gt_u32 s[{50+2*k}:{51+2*k}], s49, v5")
        o(f"s_mov_b64 exec, s[{50+2*k}:{51+2*k}]")
        o(f"ds_read_b64 v[{28+2*k}:{29+2*k}], v6 offset:{C_REC + 4096*k}")
        o("s_mov_b64 exec, -1")
    o("s_waitcnt lgkmcnt(0)")
    for k in range(8):
        o(f"v_lshrrev_b32 v5, 24, v{28+2*k}")
        o("v_lshlrev_b32 v5, 2, v5")
        o(f"s_mov_b64 exec, s[{50+2*k}:{51+2*k}]")
        o(f"ds_add_rtn_u32 v{44+k}, v5, v7 offset:{C_CNT}")
        o("s_mov_b64 exec, -1")
    o("s_waitcnt lgkmcnt(0)")
    o("s_barrier")
    o("s_cmp_lg_u32 s38, 0")
    o("s_cbranch_scc1 C_scan_done")
    o("v_lshlrev_b32 v6, 3, v0")
    o(f"ds_read_b64 v[8:9], v6 offset:{C_CNT}")
    o("s_waitcnt lgkmcnt(0)")
    o("v_add_u32 v10, v8, v9")
    o("v_mov_b32 v12, v10")
    wave_scan(12)
    o("v_sub_u32 v12, v12, v10")
    o("v_add_u32 v13, v12, v8")
    o(f"ds_write_b64 v6, v[12:13] offset:{C_NOFF}")
    o("s_waitcnt lgkmcnt(0)")
    lab("C_scan_done")
    o("s_barrier")
    for k in range(8):
        o(f"v_lshrrev_b32 v5, 24, v{28+2*k}")
        o("v_lshlrev_b32 v5, 2, v5")
        o(f"s_mov_b64 exec, s[{50+2*k}:{51+2*k}]")
        o(f"ds_read_b32 v{52+k}, v5 offset:{C_NOFF}")
        o("s_mov_b64 exec, -1")
    o("s_waitcnt lgkmcnt(0)")
    for k in range(8):
        o(f"v_add_u32 v5, v{52+k}, v{44+k}")
        o("v_lshlrev_b32 v5, 3, v5")
        o(f"s_mov_b64 exec, s[{50+2*k}:{51+2*k}]")
        o(f"ds_write_b64 v5, v[{28+2*k}:{29+2*k}] offset:{C_REC}")
        o("s_mov_b64 exec, -1")
    o("s_waitcnt lgkmcnt(0)")
    o("s_barrier")
    stamp()
    o("v_lshlrev_b32 v5, 3, v3")
    o("v_add_u32 v5, s38, v5")
    o(f"v_cmp_gt_u32 vcc, {NB}, v5")
    o("v_lshlrev_b32 v6, 2, v5")
    o("v_min_u32 v6, 508, v6")
    o(f"ds_read_b32 v8, v6 offset:{C_NOFF}")
    o(f"ds_read_b32 v9, v6 offset:{C_CNT}")
    o("s_waitcnt lgkmcnt(0)")
    o("v_cndmask_b32 v9, 0, v9, vcc")
    o("v_add_u32 v10, 15, v9")
    o("v_lshrrev_b32 v10, 4, v10")
    o("v_mov_b32 v11, v10")
    wave_scan(11)
    o("v_readlane_b32 s44, v11, 63")
    o("v_sub_u32 v11, v11, v10")
    o(f"s_mul_i32 s45, s38, {TLN*4}")
    o(f"s_add_u32 s45, s45, {C_TL}")
    o("v_lshlrev_b32 v11, 2, v11")
    o("v_add_u32 v11, s45, v11")
    o("v_mov_b32 v12, 0")
    o("v_lshlrev_b32 v13, 17, v5")
    lab("C_tl_loop")
    o("v_cmp_lt_u32 vcc, v12, v10")
    o("s_cbranch_vccz C_tl_done")
    o("s_and_saveexec_b64 s[50:51], vcc")
    o("v_lshlrev_b32 v14, 4, v12")
    o("v_sub_u32 v15, v9, v14")
    o("v_min_u32 v15, 16, v15")
    o("v_add_u32 v14, v14, v8")
    o("v_lshl_or_b32 v14, v15, 12, v14")
    o("v_or_b32 v14, v14, v13")
    o("v_cmp_eq_u32 vcc, 0, v12")
    o("v_cndmask_b32 v15, 0, 1, vcc")
    o("v_lshl_or_b32 v14, v15, 24, v14")
    o("v_add_u32 v15, 1, v12")
    o("v_cmp_eq_u32 vcc, v15, v10")
    o("v_cndmask_b32 v15, 0, 1, vcc")
    o("v_lshl_or_b32 v14, v15, 25, v14")
    o("ds_write_b32 v11, v14")
    o("v_add_u32 v11, 4, v11")
    o("v_add_u32 v12, 1, v12")
    o("s_mov_b64 exec, -1")
    o("s_branch C_tl_loop")
    lab("C_tl_done")
    o("s_waitcnt lgkmcnt(0)")
    stamp()
    for r in range(4):
        o(f"v_lshl_add_u32 v{16+r}, v2, 2, {r}")
    o(f"v_lshlrev_b32 v20, 2, v1")
    o(f"v_add_u32 v20, {C_XA}, v20")
    o(f"v_lshlrev_b32 v21, 2, v1")
    o(f"v_add_u32 v21, {C_ACC}, v21")
    o("v_lshlrev_b32 v22, 4, v2")
    o("v_lshlrev_b32 v23, 3, v2")
    o("v_mov_b32 v24, s45")
    for k in range(16):
        o(f"v_mov_b32 v{DEN+k}, 0")
        o(f"v_mov_b32 v{NUM+k}, 0")
    o("s_cmp_eq_u32 s44, 0")
    o("s_cbranch_scc1 C_loop_end")
    o("ds_read_b32 v25, v24")
    o("v_add_u32 v24, 4, v24")
    o("s_mov_b32 s46, 0")

    def prefetch(slot):
        b = SLOT[slot]
        o("s_waitcnt lgkmcnt(0)")
        o("v_readfirstlane_b32 s62, v25")
        o("ds_read_b32 v25, v24")
        o("v_add_u32 v24, 4, v24")
        o("s_bfe_u32 s63, s62, 0x5000c")
        o("s_and_b32 s64, s62, 0xfff")
        o("s_sub_u32 s63, s63, 1")
        o("v_min_u32 v26, s63, v1")
        o("v_add_u32 v26, s64, v26")
        o("v_lshlrev_b32 v26, 3, v26")
        o(f"ds_read_b64 v[26:27], v26 offset:{C_REC}")
        o("s_waitcnt lgkmcnt(0)")
        o("v_lshl_add_u32 v27, v27, 7, v22")
        o("v_and_b32 v26, 0xfffff, v26")
        o("v_lshl_add_u32 v26, v26, 5, v23")
        o(f"buffer_load_dwordx4 v[{b}:{b+3}], v27, s[12:15], 0 offen")
        o(f"buffer_load_dwordx4 v[{b+4}:{b+7}], v27, s[12:15], 0 offen offset:64")
        o(f"buffer_load_dwordx2 v[{b+8}:{b+9}], v26, s[24:27], 0 offen")

    cnt_lbl = [0]
    def compute(slot):
        b = SLOT[slot]
        u = cnt_lbl[0]; cnt_lbl[0] += 1
        o("s_bitcmp1_b32 s60, 24")
        o(f"s_cbranch_scc0 C_nf{u}")
        o("s_bfe_u32 s65, s60, 0x70011")
        o("s_lshl_b32 s65, s65, 8")
        o("v_add_u32 v28, s65, v20")
        for nt in range(4):
            for r in range(4):
                o(f"ds_read_b32 v{CXA+4*nt+r}, v28 offset:{64*nt}")
        o("s_waitcnt lgkmcnt(0)")
        lab(f"C_nf{u}")
        o("s_bfe_u32 s66, s60, 0x5000c")
        for r in range(4):
            o(f"v_cmp_gt_u32 s[{50+2*r}:{51+2*r}], s66, v{16+r}")
        o("s_waitcnt vmcnt(6)")
        for nt in range(4):
            o(f"v_mfma_f32_16x16x16_bf16 v[{DG+4*nt}:{DG+4*nt+3}], v[{b+8}:{b+9}], v[{WF+64+2*nt}:{WF+64+2*nt+1}], v[{CXA+4*nt}:{CXA+4*nt+3}]")
        for nt in range(4):
            o(f"v_mfma_f32_16x16x32_bf16 v[{DH+4*nt}:{DH+4*nt+3}], v[{b}:{b+3}], v[{WF+32+8*nt}:{WF+32+8*nt+3}], 0")
        for nt in range(4):
            o(f"v_mfma_f32_16x16x32_bf16 v[{DG+4*nt}:{DG+4*nt+3}], v[{b}:{b+3}], v[{WF+8*nt}:{WF+8*nt+3}], v[{DG+4*nt}:{DG+4*nt+3}]")
        for nt in range(4):
            o(f"v_mfma_f32_16x16x32_bf16 v[{DH+4*nt}:{DH+4*nt+3}], v[{b+4}:{b+7}], v[{WF+32+8*nt+4}:{WF+32+8*nt+7}], v[{DH+4*nt}:{DH+4*nt+3}]")
        for nt in range(4):
            o(f"v_mfma_f32_16x16x32_bf16 v[{DG+4*nt}:{DG+4*nt+3}], v[{b+4}:{b+7}], v[{WF+8*nt+4}:{WF+8*nt+7}], v[{DG+4*nt}:{DG+4*nt+3}]")
        o("s_nop 7")
        for k in range(16):
            o(f"v_mul_f32 v{DG+k}, 0xbfb8aa3b, v{DG+k}")
        for k in range(16):
            o(f"v_exp_f32 v{DG+k}, v{DG+k}")
        for k in range(16):
            o(f"v_add_f32 v{DG+k}, 1.0, v{DG+k}")
        for k in range(16):
            o(f"v_rcp_f32 v{DG+k}, v{DG+k}")
        o("s_nop 0")
        for r in range(4):
            o(f"s_mov_b64 exec, s[{50+2*r}:{51+2*r}]")
            for nt in range(4):
                k = 4 * nt + r
                o(f"v_add_f32 v{DEN+k}, v{DEN+k}, v{DG+k}")
                o(f"v_fmac_f32 v{NUM+k}, v{DG+k}, v{DH+k}")
        o("s_mov_b64 exec, -1")
        o("s_bitcmp1_b32 s60, 25")
        o(f"s_cbranch_scc0 C_nl{u}")
        o("s_bfe_u32 s65, s60, 0x70011")
        o("s_lshl_b32 s65, s65, 9")
        o("v_add_u32 v28, s65, v21")
        for nt in range(4):
            for base in (DEN, NUM):
                a = base + 4 * nt
                o(f"v_add_f32 v{a}, v{a}, v{a+1}")
                o(f"v_add_f32 v{a+2}, v{a+2}, v{a+3}")
                o(f"v_add_f32 v{a}, v{a}, v{a+2}")
                o(f"ds_add_f32 v28, v{a} offset:{64*nt + (256 if base == NUM else 0)}")
        o("s_waitcnt lgkmcnt(0)")
        for k in range(16):
            o(f"v_mov_b32 v{DEN+k}, 0")
            o(f"v_mov_b32 v{NUM+k}, 0")
        lab(f"C_nl{u}")

    prefetch(0)
    o("s_mov_b32 s60, s62")
    prefetch(1)
    o("s_mov_b32 s61, s62")
    lab("C_loop")
    for u in range(3):
        prefetch((u + 2) % 3)
        compute(u)
        o("s_mov_b32 s60, s61")
        o("s_mov_b32 s61, s62")
        o("s_add_u32 s46, s46, 1")
        o("s_cmp_ge_u32 s46, s44")
        o("s_cbranch_scc1 C_loop_end")
    o("s_branch C_loop")
    lab("C_loop_end")
    o("s_waitcnt vmcnt(0) lgkmcnt(0)")
    stamp()
    o("s_barrier")
    o(f"s_add_u32 s48, s48, {CAP}")
    o("s_cmp_lt_u32 s48, s47")
    o("s_cbranch_scc1 C_round")
    o("v_mov_b32 v40, 0x358637bd")
    for k in range(7):
        o(f"v_add_u32 v5, {512*k}, v0")
        o("v_lshrrev_b32 v6, 5, v5")
        o("v_and_b32 v7, 31, v5")
        o("v_add_u32 v8, s3, v6")
        o(f"v_cmp_gt_u32 vcc, {NB}, v6")
        o(f"s_mov_b32 s54, {N}")
        o("v_cmp_gt_u32 s[50:51], s54, v8")
        o("s_and_b64 vcc, vcc, s[50:51]")
        o("s_and_saveexec_b64 s[52:53], vcc")
        o("v_lshlrev_b32 v9, 9, v6")
        o("v_lshl_add_u32 v9, v7, 3, v9")
        o(f"ds_read_b64 v[10:11], v9 offset:{C_ACC}")
        o(f"ds_read_b64 v[12:13], v9 offset:{C_ACC+256}")
        o("v_lshlrev_b32 v9, 8, v6")
        o("v_lshl_add_u32 v9, v7, 3, v9")
        o(f"ds_read_b64 v[14:15], v9 offset:{C_XU}")
        o("v_lshlrev_b32 v9, 7, v8")
        o("v_lshl_add_u32 v9, v7, 2, v9")
        o("buffer_load_dword v16, v9, s[12:15], 0 offen")
        o("s_waitcnt vmcnt(0) lgkmcnt(0)")
        for h in range(2):
            o(f"v_add_f32 v{10+h}, v40, v{10+h}")
            o(f"v_rcp_f32 v{10+h}, v{10+h}")
            o("s_nop 0")
            o(f"v_fma_f32 v{14+h}, v{12+h}, v{10+h}, v{14+h}")
        o("v_cvt_pk_bf16_f32 v14, v14, v15")
        o("v_lshlrev_b32 v10, 16, v14")
        o("v_and_b32 v11, 0xffff0000, v14")
        o("v_max_f32 v10, 0, v10")
        o("v_max_f32 v11, 0, v11")
        o("v_lshlrev_b32 v12, 16, v16")
        o("v_and_b32 v13, 0xffff0000, v16")
        o("v_add_f32 v10, v10, v12")
        o("v_add_f32 v11, v11, v13")
        o("v_cvt_pk_bf16_f32 v10, v10, v11")
        o("buffer_store_dword v10, v9, s[20:23], 0 offen")
        o("s_mov_b64 exec, -1")
    if DBG:
        stamp()
        o("s_load_dwordx2 s[4:5], s[0:1], 80")
        o("s_waitcnt lgkmcnt(0)")
        srd(28, 4, 256)
        o("s_cmp_lg_u32 s2, 7")
        o("s_cbranch_scc1 C_end")
        o("v_lshlrev_b32 v5, 2, v0")
        for k in range(1, 7):
            o(f"s_sub_u32 s54, s{70+2*k}, s70")
            o("v_mov_b32 v6, s54")
            o(f"v_cmp_eq_u32 vcc, {k}, v0")
            o("s_and_saveexec_b64 s[52:53], vcc")
            o("buffer_store_dword v6, v5, s[28:31], 0 offen")
            o("s_mov_b64 exec, -1")
    lab("C_end")
    o("s_endpgm")

def kd(name, vg, sg):
    return f""".amdhsa_kernel {name}
  .amdhsa_next_free_vgpr {vg}
  .amdhsa_next_free_sgpr {sg}
  .amdhsa_accum_offset {vg}
  .amdhsa_group_segment_fixed_size 0
  .amdhsa_kernarg_size 96
  .amdhsa_user_sgpr_count 2
  .amdhsa_user_sgpr_kernarg_segment_ptr 1
  .amdhsa_system_sgpr_workgroup_id_x 1
.end_amdhsa_kernel
"""

def main():
    hdr = open("standalone__edge_featured_mpnn_gatedgcn__graph.s.ref").read().split("\n")
    head = [l for l in hdr if l.startswith(";") and "@launch" not in l and "Override" not in l and "grid=ceil" not in l]
    out = head[:]
    out.append(f"; @launch kernel={PART} grid=({NBK+9},1,1) block=(256,1,1) lds=27392")
    out.append(f"; @launch kernel={MAIN} grid=({NBK},1,1) block=(512,1,1) lds={C_LDS}")
    out.append('.amdgcn_target "amdgcn-amd-amdhsa--gfx950"')
    out.append(".text")
    global L
    for name, fn in ((PART, gen_part), (MAIN, gen_main)):
        L = []
        out.append(f".globl {name}")
        out.append(".p2align 8")
        out.append(f".type {name},@function")
        fn()
        out += L
    out.append('.section .rodata,"a"')
    out.append(".p2align 6")
    out.append(kd(PART, 96, 64))
    out.append(".p2align 6")
    out.append(kd(MAIN, 256, 96))
    open("standalone__edge_featured_mpnn_gatedgcn__graph.s", "w").write("\n".join(out) + "\n")
    print("LDS C:", C_LDS)

main()
```

```python
import sys, re, os
DBG = int(os.environ.get("DBG", "0"))
stamp_n = [0]
def stamp():
    if DBG:
        k = stamp_n[0]; stamp_n[0] += 1
        o("s_waitcnt lgkmcnt(0)")
        o(f"s_memtime s[{70+2*k}:{71+2*k}]")
        o("s_waitcnt lgkmcnt(0)")


N = 25000; E = 800000; NB = 98; NBK = 256; CH = 3125
MAIN = "standalone__edge_featured_mpnn_gatedgcn__graph_kernel"
PART = "gcn_part_kernel"

WS_REC = 0
WS_OFF = E * 8
WS_FRAG = WS_OFF + 257 * 256 * 4
WS_SIZE = 0x10000000

L = []
def o(s):
    m = re.match(r"(ds_\w+) (.*) offset:(\d+)$", s)
    if m and int(m.group(3)) > 65535:
        op, args, off = m.group(1), m.group(2), int(m.group(3))
        parts = [p.strip() for p in args.split(",")]
        ai = 1 if op.startswith("ds_read") or op.endswith("rtn_u32") else 0
        hi = off & ~0xfff
        L.append(f"    v_add_u32 v63, {hi}, {parts[ai]}")
        parts[ai] = "v63"
        L.append(f"    {op} {', '.join(parts)} offset:{off - hi}")
        return
    if s.startswith("v_readfirstlane") or s.startswith("v_readlane"):
        L.append("    s_nop 0")
    if s.startswith("v_cndmask"):
        L.append("    s_nop 1")
    L.append("    " + s)
def lab(s): L.append(s + ":")

def srd(d, b, size):
    o(f"s_mov_b32 s{d}, s{b}")
    o(f"s_mov_b32 s{d+1}, s{b+1}")
    o(f"s_mov_b32 s{d+2}, {size}")
    o(f"s_mov_b32 s{d+3}, 0x00020000")

def wave_scan(vi):
    o("s_nop 1")
    for sh in (1, 2, 4, 8):
        o(f"v_add_u32_dpp v{vi}, v{vi}, v{vi} row_shr:{sh} row_mask:0xf bank_mask:0xf bound_ctrl:0")
        o("s_nop 1")
    o(f"v_add_u32_dpp v{vi}, v{vi}, v{vi} row_bcast:15 row_mask:0xa bank_mask:0xf")
    o("s_nop 1")
    o(f"v_add_u32_dpp v{vi}, v{vi}, v{vi} row_bcast:31 row_mask:0xc bank_mask:0xf")
    o("s_nop 1")

def scan256(vin, vex, vt, lds_sc, swave, st, nbar_waves_extra=False):
    o(f"v_mov_b32 v{vex}, v{vin}")
    wave_scan(vex)
    o(f"v_readlane_b32 s{st}, v{vex}, 63")
    o(f"v_mov_b32 v{vt}, s{swave}")
    o(f"v_lshlrev_b32 v{vt}, 2, v{vt}")
    o(f"v_mov_b32 v{vt+1}, s{st}")
    o(f"ds_write_b32 v{vt}, v{vt+1} offset:{lds_sc}")
    o("s_waitcnt lgkmcnt(0)")
    o("s_barrier")
    o(f"v_mov_b32 v{vt}, 0")
    o(f"ds_read_b128 v[{vt}:{vt+3}], v{vt} offset:{lds_sc}")
    o("s_waitcnt lgkmcnt(0)")
    for k in range(3):
        o(f"v_readfirstlane_b32 s{st+1+k}, v{vt+k}")
    o(f"s_mov_b32 s{st}, 0")
    for k in range(3):
        o(f"s_cmp_gt_u32 s{swave}, {k}")
        o(f"s_cselect_b32 s{st+4}, s{st+1+k}, 0")
        o(f"s_add_u32 s{st}, s{st}, s{st+4}")
    o(f"v_sub_u32 v{vex}, v{vex}, v{vin}")
    o(f"v_add_u32 v{vex}, s{st}, v{vex}")

def gen_part():
    A_HIST = 0; A_OFFS = 1024; A_SC = 2048; A_STAGE = 2304
    lab(PART)
    o("s_load_dwordx2 s[4:5], s[0:1], 16")
    o("s_load_dwordx2 s[6:7], s[0:1], 24")
    o("s_load_dwordx2 s[8:9], s[0:1], 88")
    o(f"s_cmp_ge_u32 s2, {NBK}")
    o("s_cbranch_scc1 A_frag")
    o("s_waitcnt lgkmcnt(0)")
    srd(12, 4, E * 4)
    srd(16, 6, E * 4)
    srd(20, 8, WS_SIZE)
    o(f"s_mul_i32 s3, s2, {CH*4}")
    o("v_lshlrev_b32 v1, 2, v0")
    o("v_lshrrev_b32 v2, 6, v0")
    o("v_readfirstlane_b32 s26, v2")
    D0, S0, B0, R0 = 10, 23, 36, 49
    for i in range(13):
        o(f"s_add_u32 s33, s3, {i*1024}")
        o(f"buffer_load_dword v{D0+i}, v1, s[16:19], s33 offen")
    for i in range(13):
        o(f"s_add_u32 s33, s3, {i*1024}")
        o(f"buffer_load_dword v{S0+i}, v1, s[12:15], s33 offen")
    o("v_mov_b32 v3, 0")
    o(f"ds_write_b32 v1, v3 offset:{A_HIST}")
    o(f"v_cmp_gt_u32 s[24:25], {CH - 12*256}, v0")
    o("v_mov_b32 v4, 1")
    o("s_waitcnt lgkmcnt(0)")
    o("s_barrier")
    for i in range(13):
        o(f"s_waitcnt vmcnt({25-i})")
        o(f"v_mul_u32_u24 v{B0+i}, 0x29cc, v{D0+i}")
        o(f"v_lshrrev_b32 v{B0+i}, 20, v{B0+i}")
        o(f"v_lshlrev_b32 v{B0+i}, 2, v{B0+i}")
        if i == 12:
            o("s_mov_b64 exec, s[24:25]")
        o(f"ds_add_rtn_u32 v{R0+i}, v{B0+i}, v4 offset:{A_HIST}")
        if i == 12:
            o("s_mov_b64 exec, -1")
    o("s_waitcnt lgkmcnt(0)")
    o("s_barrier")
    o(f"ds_read_b32 v5, v1 offset:{A_HIST}")
    o("s_waitcnt lgkmcnt(0)")
    scan256(5, 6, 64, A_SC, 26, 27)
    o(f"ds_write_b32 v1, v6 offset:{A_OFFS}")
    o(f"v_lshlrev_b32 v7, 10, v0")
    o(f"s_lshl_b32 s27, s2, 2")
    o(f"s_add_u32 s27, s27, {WS_OFF}")
    o(f"buffer_store_dword v6, v7, s[20:23], s27 offen")
    o(f"v_mov_b32 v8, {CH}")
    o(f"v_mov_b32 v9, {256*1024}")
    o("v_cmp_eq_u32 vcc, 0, v0")
    o("s_and_saveexec_b64 s[28:29], vcc")
    o(f"buffer_store_dword v8, v9, s[20:23], s27 offen")
    o("s_mov_b64 exec, -1")
    o("s_waitcnt lgkmcnt(0)")
    o("s_barrier")
    o("s_waitcnt vmcnt(0)")
    for i in range(13):
        o(f"ds_read_b32 v{64+i}, v{B0+i} offset:{A_OFFS}")
    o(f"s_mul_i32 s30, s2, {CH}")
    for i in range(13):
        o(f"s_waitcnt lgkmcnt({12-i})")
        o(f"v_add_u32 v{64+i}, v{64+i}, v{R0+i}")
        o(f"v_lshlrev_b32 v{64+i}, 3, v{64+i}")
        o(f"v_mul_u32_u24 v2, {NB//2}, v{B0+i}")
        o(f"v_lshrrev_b32 v2, 1, v2")
        o(f"v_sub_u32 v2, v{D0+i}, v2")
        o(f"v_lshlrev_b32 v2, 24, v2")
        o(f"v_add_u32 v3, {i*256}, v0")
        o(f"v_add_u32 v3, s30, v3")
        o(f"v_or_b32 v{D0+i}, v2, v3")
        if i == 12:
            o("s_mov_b64 exec, s[24:25]")
        o(f"v_mov_b32 v2, v{D0+i}")
        o(f"v_mov_b32 v3, v{S0+i}")
        o(f"ds_write_b64 v{64+i}, v[2:3] offset:{A_STAGE}")
        if i == 12:
            o("s_mov_b64 exec, -1")
    o("s_waitcnt lgkmcnt(0)")
    o("s_barrier")
    o("v_lshlrev_b32 v1, 3, v0")
    for i in range(13):
        o(f"ds_read_b64 v[{64+2*i}:{65+2*i}], v1 offset:{A_STAGE + i*2048}")
    o(f"s_mul_i32 s31, s2, {CH*8}")
    for i in range(13):
        o(f"s_waitcnt lgkmcnt({12-i})")
        if i == 12:
            o("s_mov_b64 exec, s[24:25]")
        o(f"s_add_u32 s32, s31, {i*2048}")
        o(f"buffer_store_dwordx2 v[{64+2*i}:{65+2*i}], v1, s[20:23], s32 offen")
    o("s_endpgm")

    lab("A_frag")
    o(f"s_sub_u32 s3, s2, {NBK}")
    o("v_lshrrev_b32 v2, 6, v0")
    o("v_readfirstlane_b32 s26, v2")
    o("s_lshl_b32 s3, s3, 2")
    o("s_add_u32 s3, s3, s26")
    o("s_cmp_ge_u32 s3, 36")
    o("s_cbranch_scc1 A_end")
    o("s_load_dwordx2 s[34:35], s[0:1], 32")
    o("s_load_dwordx2 s[36:37], s[0:1], 40")
    o("s_load_dwordx2 s[38:39], s[0:1], 48")
    o("s_load_dwordx2 s[40:41], s[0:1], 56")
    o("s_load_dwordx2 s[42:43], s[0:1], 64")
    o("s_waitcnt lgkmcnt(0)")
    srd(20, 8, WS_SIZE)
    o("s_mov_b64 s[44:45], s[36:37]")
    o("s_mov_b32 s27, s3")
    o("s_cmp_ge_u32 s3, 8")
    o("s_cselect_b64 s[44:45], s[42:43], s[44:45]")
    o("s_cselect_b32 s28, 8, 0")
    o("s_sub_u32 s27, s3, s28")
    o("s_cmp_ge_u32 s3, 16")
    o("s_cselect_b64 s[44:45], s[38:39], s[44:45]")
    o("s_cselect_b32 s28, 16, s28")
    o("s_sub_u32 s27, s3, s28")
    o("s_cmp_ge_u32 s3, 20")
    o("s_cselect_b64 s[44:45], s[34:35], s[44:45]")
    o("s_cselect_b32 s28, 20, s28")
    o("s_sub_u32 s27, s3, s28")
    o("s_cmp_ge_u32 s3, 28")
    o("s_cselect_b64 s[44:45], s[40:41], s[44:45]")
    o("s_cselect_b32 s28, 28, s28")
    o("s_sub_u32 s27, s3, s28")
    srd(12, 44, 64 * 64 * 2)
    o("v_and_b32 v1, 63, v0")
    o("v_and_b32 v2, 15, v1")
    o("v_lshrrev_b32 v3, 4, v1")
    o("s_lshl_b32 s29, s3, 10")
    o(f"s_add_u32 s29, s29, {WS_FRAG}")
    o("v_lshlrev_b32 v4, 4, v1")
    o("s_cmp_eq_u32 s28, 16")
    o("s_cbranch_scc1 A_fragc")
    o("s_lshr_b32 s30, s27, 1")
    o("s_and_b32 s31, s27, 1")
    o("s_lshl_b32 s30, s30, 5")
    o("s_lshl_b32 s31, s31, 12")
    o("s_add_u32 s30, s30, s31")
    o("v_lshlrev_b32 v5, 10, v3")
    o("v_lshl_add_u32 v5, v2, 1, v5")
    for j in range(8):
        o(f"buffer_load_ushort v{8+j}, v5, s[12:15], s30 offen offset:{j*128}")
    o("s_waitcnt vmcnt(0)")
    for j in range(4):
        o(f"v_lshl_or_b32 v{16+j}, v{9+2*j}, 16, v{8+2*j}")
    o("buffer_store_dwordx4 v[16:19], v4, s[20:23], s29 offen")
    o("s_endpgm")
    lab("A_fragc")
    o("s_lshl_b32 s30, s27, 5")
    o("v_lshlrev_b32 v5, 9, v3")
    o("v_lshl_add_u32 v5, v2, 1, v5")
    for j in range(4):
        o(f"buffer_load_ushort v{8+j}, v5, s[12:15], s30 offen offset:{j*128}")
    o("s_waitcnt vmcnt(0)")
    for j in range(2):
        o(f"v_lshl_or_b32 v{16+j}, v{9+2*j}, 16, v{8+2*j}")
    o("v_lshlrev_b32 v4, 3, v1")
    o("buffer_store_dwordx2 v[16:17], v4, s[20:23], s29 offen")
    lab("A_end")
    o("s_endpgm")

CAP = 4096
C_REC = 0
C_ACC = C_REC + CAP * 8
C_XA = C_ACC + 112 * 512
C_XU = C_XA + 112 * 256
C_CNT = C_XU + 112 * 256
C_NOFF = C_CNT + 512
C_SC = C_NOFF + 512
C_TL = C_SC + 256
TLN = 384
C_LDS = C_TL + 8 * TLN * 4
WF = 64
SLOT = [136, 148, 160]
DG, DH, DEN, NUM, CXA = 172, 188, 204, 220, 236

def frag_load(first, cnt, dst):
    for k in range(cnt):
        o(f"s_add_u32 s40, s39, {(first+k)*1024}")
        o(f"buffer_load_dwordx4 v[{dst+4*k}:{dst+4*k+3}], v4, s[16:19], s40 offen")

def gen_main():
    lab(MAIN)
    o("s_load_dwordx2 s[4:5], s[0:1], 0")
    o("s_load_dwordx2 s[6:7], s[0:1], 8")
    o("s_load_dwordx2 s[8:9], s[0:1], 88")
    o("s_load_dwordx2 s[10:11], s[0:1], 72")
    o(f"s_cmp_ge_u32 s2, {NBK}")
    o("s_cbranch_scc1 C_end")
    o("s_waitcnt lgkmcnt(0)")
    stamp()
    srd(12, 4, N * 128)
    srd(24, 6, E * 32)
    srd(16, 8, WS_SIZE)
    srd(20, 10, N * 128)
    o(f"s_mul_i32 s3, s2, {NB}")
    o("v_and_b32 v3, 63, v0")
    o("v_and_b32 v1, 15, v0")
    o("v_bfe_u32 v2, v0, 4, 2")
    o("v_lshrrev_b32 v5, 6, v0")
    o("v_readfirstlane_b32 s38, v5")
    o("v_lshlrev_b32 v4, 4, v3")
    o(f"s_mov_b32 s39, {WS_FRAG}")
    o("s_cmp_ge_u32 s38, 7")
    o("s_cbranch_scc1 C_p0b")
    frag_load(20, 16, WF)
    o("s_lshl_b32 s41, s38, 4")
    o("s_add_u32 s41, s41, s3")
    o("v_add_u32 v6, s41, v1")
    o("v_lshlrev_b32 v6, 7, v6")
    o("v_lshl_add_u32 v6, v2, 4, v6")
    o("buffer_load_dwordx4 v[8:11], v6, s[12:15], 0 offen")
    o("buffer_load_dwordx4 v[12:15], v6, s[12:15], 0 offen offset:64")
    o("s_waitcnt vmcnt(0)")
    for nt in range(8):
        o(f"v_mfma_f32_16x16x32_bf16 v[{16+4*nt}:{19+4*nt}], v[8:11], v[{WF+8*nt}:{WF+8*nt+3}], 0")
    for nt in range(8):
        o(f"v_mfma_f32_16x16x32_bf16 v[{16+4*nt}:{19+4*nt}], v[12:15], v[{WF+8*nt+4}:{WF+8*nt+7}], v[{16+4*nt}:{19+4*nt}]")
    o("s_nop 7")
    o("s_nop 7")
    o("v_lshlrev_b32 v6, 10, v2")
    o("v_lshl_add_u32 v6, v1, 2, v6")
    o("s_lshl_b32 s41, s38, 12")
    o("v_add_u32 v6, s41, v6")
    for nt in range(8):
        base = C_XA if nt < 4 else C_XU
        for r in range(0, 4, 2):
            a = 16 + 4 * nt + r
            o(f"v_cvt_pk_bf16_f32 v7, v{a}, v{a+1}")
            o(f"v_lshlrev_b32 v{a}, 16, v7")
            o(f"v_and_b32 v{a+1}, 0xffff0000, v7")
            o(f"ds_write_b32 v6, v{a} offset:{base + (nt%4)*64 + r*256}")
            o(f"ds_write_b32 v6, v{a+1} offset:{base + (nt%4)*64 + (r+1)*256}")
    lab("C_p0b")
    frag_load(0, 16, WF)
    o("v_lshlrev_b32 v5, 3, v3")
    for k in range(4):
        o(f"s_add_u32 s40, s39, {(16+k)*1024}")
        o(f"buffer_load_dwordx2 v[{WF+64+2*k}:{WF+64+2*k+1}], v5, s[16:19], s40 offen")
    o("v_mov_b32 v8, 0")
    o("v_mov_b32 v9, 0")
    o("v_mov_b32 v10, 0")
    o("v_mov_b32 v11, 0")
    o("v_lshlrev_b32 v6, 4, v0")
    for k in range(7):
        o(f"ds_write_b128 v6, v[8:11] offset:{C_ACC + k*8192}")
    o("v_lshlrev_b32 v6, 2, v0")
    o("s_lshl_b32 s41, s2, 10")
    o(f"s_add_u32 s41, s41, {WS_OFF}")
    o("s_cmp_ge_u32 s38, 4")
    o("s_cbranch_scc1 C_p0c")
    o("buffer_load_dword v20, v6, s[16:19], s41 offen")
    o("buffer_load_dword v21, v6, s[16:19], s41 offen offset:1024")
    o("s_waitcnt vmcnt(0)")
    o("v_sub_u32 v21, v21, v20")
    lab("C_p0c")
    o("s_cmp_ge_u32 s38, 4")
    o("s_cbranch_scc0 C_p0d")
    o("v_mov_b32 v20, 0")
    o("v_mov_b32 v21, 0")
    lab("C_p0d")
    scan256(21, 22, 24, C_SC, 38, 42)
    o("v_mov_b32 v24, 0")
    o(f"ds_read_b128 v[24:27], v24 offset:{C_SC}")
    o("s_waitcnt lgkmcnt(0)")
    o("v_add_u32 v24, v24, v25")
    o("v_add_u32 v26, v26, v27")
    o("v_add_u32 v24, v24, v26")
    o("v_readfirstlane_b32 s47, v24")
    o(f"v_mul_u32_u24 v23, {CH*8}, v0")
    o("v_lshl_add_u32 v23, v20, 3, v23")
    o("s_mov_b32 s48, 0")
    stamp()
    lab("C_round")
    o("s_cmp_ge_u32 s38, 4")
    o("s_cbranch_scc1 C_cp_done")
    o("v_mov_b32 v28, 0")
    lab("C_cp_loop")
    o("v_cmp_lt_u32 vcc, v28, v21")
    o("s_cbranch_vccz C_cp_done")
    for u in range(4):
        o(f"v_add_u32 v{30+u}, {u}, v28")
        o(f"v_cmp_lt_u32 s[{50+2*u}:{51+2*u}], v{30+u}, v21")
        o(f"v_add_u32 v{30+u}, v{30+u}, v22")
        o(f"v_subrev_u32 v{30+u}, s48, v{30+u}")
        o(f"v_cmp_gt_u32 vcc, {CAP}, v{30+u}")
        o(f"s_and_b64 s[{50+2*u}:{51+2*u}], s[{50+2*u}:{51+2*u}], vcc")
        o(f"v_lshlrev_b32 v{30+u}, 3, v{30+u}")
        o(f"v_lshl_add_u32 v29, v28, 3, v23")
        o(f"s_mov_b64 exec, s[{50+2*u}:{51+2*u}]")
        o(f"buffer_load_dwordx2 v[{36+2*u}:{37+2*u}], v29, s[16:19], 0 offen offset:{8*u}")
        o("s_mov_b64 exec, -1")
    for u in range(4):
        o(f"s_waitcnt vmcnt({3-u})")
        o(f"s_mov_b64 exec, s[{50+2*u}:{51+2*u}]")
        o(f"ds_write_b64 v{30+u}, v[{36+2*u}:{37+2*u}] offset:{C_REC}")
        o("s_mov_b64 exec, -1")
    o("v_add_u32 v28, 4, v28")
    o("s_branch C_cp_loop")
    lab("C_cp_done")
    stamp()
    o("v_lshlrev_b32 v6, 2, v0")
    o("v_mov_b32 v7, 0")
    o("v_cmp_gt_u32 vcc, 128, v0")
    o("s_and_saveexec_b64 s[50:51], vcc")
    o(f"ds_write_b32 v6, v7 offset:{C_CNT}")
    o("s_mov_b64 exec, -1")
    o("s_waitcnt vmcnt(0) lgkmcnt(0)")
    o("s_barrier")
    o("s_sub_u32 s49, s47, s48")
    o(f"s_min_u32 s49, s49, {CAP}")
    o("v_lshlrev_b32 v6, 3, v0")
    o("v_mov_b32 v7, 1")
    for k in range(8):
        o(f"v_add_u32 v5, {512*k}, v0")
        o(f"v_cmp_gt_u32 s[{50+2*k}:{51+2*k}], s49, v5")
        o(f"s_mov_b64 exec, s[{50+2*k}:{51+2*k}]")
        o(f"ds_read_b64 v[{28+2*k}:{29+2*k}], v6 offset:{C_REC + 4096*k}")
        o("s_mov_b64 exec, -1")
    o("s_waitcnt lgkmcnt(0)")
    for k in range(8):
        o(f"v_lshrrev_b32 v5, 24, v{28+2*k}")
        o("v_lshlrev_b32 v5, 2, v5")
        o(f"s_mov_b64 exec, s[{50+2*k}:{51+2*k}]")
        o(f"ds_add_rtn_u32 v{44+k}, v5, v7 offset:{C_CNT}")
        o("s_mov_b64 exec, -1")
    o("s_waitcnt lgkmcnt(0)")
    o("s_barrier")
    o("s_cmp_lg_u32 s38, 0")
    o("s_cbranch_scc1 C_scan_done")
    o("v_lshlrev_b32 v6, 3, v0")
    o(f"ds_read_b64 v[8:9], v6 offset:{C_CNT}")
    o("s_waitcnt lgkmcnt(0)")
    o("v_add_u32 v10, v8, v9")
    o("v_mov_b32 v12, v10")
    wave_scan(12)
    o("v_sub_u32 v12, v12, v10")
    o("v_add_u32 v13, v12, v8")
    o(f"ds_write_b64 v6, v[12:13] offset:{C_NOFF}")
    o("s_waitcnt lgkmcnt(0)")
    lab("C_scan_done")
    o("s_barrier")
    for k in range(8):
        o(f"v_lshrrev_b32 v5, 24, v{28+2*k}")
        o("v_lshlrev_b32 v5, 2, v5")
        o(f"s_mov_b64 exec, s[{50+2*k}:{51+2*k}]")
        o(f"ds_read_b32 v{52+k}, v5 offset:{C_NOFF}")
        o("s_mov_b64 exec, -1")
    o("s_waitcnt lgkmcnt(0)")
    for k in range(8):
        o(f"v_add_u32 v5, v{52+k}, v{44+k}")
        o("v_lshlrev_b32 v5, 3, v5")
        o(f"s_mov_b64 exec, s[{50+2*k}:{51+2*k}]")
        o(f"ds_write_b64 v5, v[{28+2*k}:{29+2*k}] offset:{C_REC}")
        o("s_mov_b64 exec, -1")
    o("s_waitcnt lgkmcnt(0)")
    o("s_barrier")
    stamp()
    o("v_lshlrev_b32 v5, 3, v3")
    o("v_add_u32 v5, s38, v5")
    o(f"v_cmp_gt_u32 vcc, {NB}, v5")
    o("v_lshlrev_b32 v6, 2, v5")
    o("v_min_u32 v6, 508, v6")
    o(f"ds_read_b32 v8, v6 offset:{C_NOFF}")
    o(f"ds_read_b32 v9, v6 offset:{C_CNT}")
    o("s_waitcnt lgkmcnt(0)")
    o("v_cndmask_b32 v9, 0, v9, vcc")
    o("v_add_u32 v10, 15, v9")
    o("v_lshrrev_b32 v10, 4, v10")
    o("v_mov_b32 v11, v10")
    wave_scan(11)
    o("v_readlane_b32 s44, v11, 63")
    o("v_sub_u32 v11, v11, v10")
    o(f"s_mul_i32 s45, s38, {TLN*4}")
    o(f"s_add_u32 s45, s45, {C_TL}")
    o("v_lshlrev_b32 v11, 2, v11")
    o("v_add_u32 v11, s45, v11")
    o("v_mov_b32 v12, 0")
    o("v_lshlrev_b32 v13, 17, v5")
    lab("C_tl_loop")
    o("v_cmp_lt_u32 vcc, v12, v10")
    o("s_cbranch_vccz C_tl_done")
    o("s_and_saveexec_b64 s[50:51], vcc")
    o("v_lshlrev_b32 v14, 4, v12")
    o("v_sub_u32 v15, v9, v14")
    o("v_min_u32 v15, 16, v15")
    o("v_add_u32 v14, v14, v8")
    o("v_lshl_or_b32 v14, v15, 12, v14")
    o("v_or_b32 v14, v14, v13")
    o("v_cmp_eq_u32 vcc, 0, v12")
    o("v_cndmask_b32 v15, 0, 1, vcc")
    o("v_lshl_or_b32 v14, v15, 24, v14")
    o("v_add_u32 v15, 1, v12")
    o("v_cmp_eq_u32 vcc, v15, v10")
    o("v_cndmask_b32 v15, 0, 1, vcc")
    o("v_lshl_or_b32 v14, v15, 25, v14")
    o("ds_write_b32 v11, v14")
    o("v_add_u32 v11, 4, v11")
    o("v_add_u32 v12, 1, v12")
    o("s_mov_b64 exec, -1")
    o("s_branch C_tl_loop")
    lab("C_tl_done")
    o("s_waitcnt lgkmcnt(0)")
    stamp()
    for r in range(4):
        o(f"v_lshl_add_u32 v{16+r}, v2, 2, {r}")
    o(f"v_lshlrev_b32 v20, 2, v1")
    o(f"v_add_u32 v20, {C_XA}, v20")
    o(f"v_lshlrev_b32 v21, 2, v1")
    o(f"v_add_u32 v21, {C_ACC}, v21")
    o("v_lshlrev_b32 v22, 4, v2")
    o("v_lshlrev_b32 v23, 3, v2")
    o("v_mov_b32 v24, s45")
    for k in range(16):
        o(f"v_mov_b32 v{DEN+k}, 0")
        o(f"v_mov_b32 v{NUM+k}, 0")
    o("s_cmp_eq_u32 s44, 0")
    o("s_cbranch_scc1 C_loop_end")
    o("ds_read_b32 v25, v24")
    o("v_add_u32 v24, 4, v24")
    o("s_mov_b32 s46, 0")
    o("s_mov_b32 s88, 0")

    def prefetch(slot):
        b = SLOT[slot]
        o("s_waitcnt lgkmcnt(0)")
        o("v_readfirstlane_b32 s62, v25")
        o("ds_read_b32 v25, v24")
        o("v_add_u32 v24, 4, v24")
        o("s_bfe_u32 s63, s62, 0x5000c")
        o("s_and_b32 s64, s62, 0xfff")
        o("s_sub_u32 s63, s63, 1")
        o("v_min_u32 v26, s63, v1")
        o("v_add_u32 v26, s64, v26")
        o("v_lshlrev_b32 v26, 3, v26")
        o(f"ds_read_b64 v[26:27], v26 offset:{C_REC}")
        o("s_waitcnt lgkmcnt(0)")
        o("v_lshl_add_u32 v27, v27, 7, v22")
        o("v_and_b32 v26, 0xfffff, v26")
        o("v_lshl_add_u32 v26, v26, 5, v23")
        if DBG == 2:
            o("v_mov_b32 v26, v23")
        o(f"buffer_load_dwordx4 v[{b}:{b+3}], v27, s[12:15], 0 offen")
        o(f"buffer_load_dwordx4 v[{b+4}:{b+7}], v27, s[12:15], 0 offen offset:64")
        o(f"buffer_load_dwordx2 v[{b+8}:{b+9}], v26, s[24:27], 0 offen")

    cnt_lbl = [0]
    def compute(slot):
        b = SLOT[slot]
        u = cnt_lbl[0]; cnt_lbl[0] += 1
        o("s_bitcmp1_b32 s60, 24")
        o(f"s_cbranch_scc0 C_nf{u}")
        o("s_bfe_u32 s65, s60, 0x70011")
        o("s_lshl_b32 s65, s65, 8")
        o("v_add_u32 v28, s65, v20")
        for nt in range(4):
            for r in range(4):
                o(f"ds_read_b32 v{CXA+4*nt+r}, v28 offset:{64*nt}")
        o("s_waitcnt lgkmcnt(0)")
        lab(f"C_nf{u}")
        o("s_bfe_u32 s66, s60, 0x5000c")
        for r in range(4):
            o(f"v_cmp_gt_u32 s[{50+2*r}:{51+2*r}], s66, v{16+r}")
        if DBG:
            o("s_memtime s[84:85]")
            o("s_waitcnt lgkmcnt(0)")
        o("s_waitcnt vmcnt(6)")
        if DBG:
            o("s_memtime s[86:87]")
            o("s_waitcnt lgkmcnt(0)")
            o("s_sub_u32 s86, s86, s84")
            o("s_add_u32 s88, s88, s86")
        for nt in range(4):
            o(f"v_mfma_f32_16x16x16_bf16 v[{DG+4*nt}:{DG+4*nt+3}], v[{b+8}:{b+9}], v[{WF+64+2*nt}:{WF+64+2*nt+1}], v[{CXA+4*nt}:{CXA+4*nt+3}]")
        for nt in range(4):
            o(f"v_mfma_f32_16x16x32_bf16 v[{DH+4*nt}:{DH+4*nt+3}], v[{b}:{b+3}], v[{WF+32+8*nt}:{WF+32+8*nt+3}], 0")
        for nt in range(4):
            o(f"v_mfma_f32_16x16x32_bf16 v[{DG+4*nt}:{DG+4*nt+3}], v[{b}:{b+3}], v[{WF+8*nt}:{WF+8*nt+3}], v[{DG+4*nt}:{DG+4*nt+3}]")
        for nt in range(4):
            o(f"v_mfma_f32_16x16x32_bf16 v[{DH+4*nt}:{DH+4*nt+3}], v[{b+4}:{b+7}], v[{WF+32+8*nt+4}:{WF+32+8*nt+7}], v[{DH+4*nt}:{DH+4*nt+3}]")
        for nt in range(4):
            o(f"v_mfma_f32_16x16x32_bf16 v[{DG+4*nt}:{DG+4*nt+3}], v[{b+4}:{b+7}], v[{WF+8*nt+4}:{WF+8*nt+7}], v[{DG+4*nt}:{DG+4*nt+3}]")
        o("s_nop 7")
        for k in range(16):
            o(f"v_mul_f32 v{DG+k}, 0xbfb8aa3b, v{DG+k}")
        for k in range(16):
            o(f"v_exp_f32 v{DG+k}, v{DG+k}")
        for k in range(16):
            o(f"v_add_f32 v{DG+k}, 1.0, v{DG+k}")
        for k in range(16):
            o(f"v_rcp_f32 v{DG+k}, v{DG+k}")
        o("s_nop 0")
        for r in range(4):
            o(f"s_mov_b64 exec, s[{50+2*r}:{51+2*r}]")
            for nt in range(4):
                k = 4 * nt + r
                o(f"v_add_f32 v{DEN+k}, v{DEN+k}, v{DG+k}")
                o(f"v_fmac_f32 v{NUM+k}, v{DG+k}, v{DH+k}")
        o("s_mov_b64 exec, -1")
        o("s_bitcmp1_b32 s60, 25")
        o(f"s_cbranch_scc0 C_nl{u}")
        o("s_bfe_u32 s65, s60, 0x70011")
        o("s_lshl_b32 s65, s65, 9")
        o("v_add_u32 v28, s65, v21")
        for nt in range(4):
            for base in (DEN, NUM):
                a = base + 4 * nt
                o(f"v_add_f32 v{a}, v{a}, v{a+1}")
                o(f"v_add_f32 v{a+2}, v{a+2}, v{a+3}")
                o(f"v_add_f32 v{a}, v{a}, v{a+2}")
                o(f"ds_add_f32 v28, v{a} offset:{64*nt + (256 if base == NUM else 0)}")
        o("s_waitcnt lgkmcnt(0)")
        for k in range(16):
            o(f"v_mov_b32 v{DEN+k}, 0")
            o(f"v_mov_b32 v{NUM+k}, 0")
        lab(f"C_nl{u}")

    prefetch(0)
    o("s_mov_b32 s60, s62")
    prefetch(1)
    o("s_mov_b32 s61, s62")
    lab("C_loop")
    for u in range(3):
        prefetch((u + 2) % 3)
        compute(u)
        o("s_mov_b32 s60, s61")
        o("s_mov_b32 s61, s62")
        o("s_add_u32 s46, s46, 1")
        o("s_cmp_ge_u32 s46, s44")
        o("s_cbranch_scc1 C_loop_end")
    o("s_branch C_loop")
    lab("C_loop_end")
    o("s_waitcnt vmcnt(0) lgkmcnt(0)")
    stamp()
    o("s_barrier")
    o(f"s_add_u32 s48, s48, {CAP}")
    o("s_cmp_lt_u32 s48, s47")
    o("s_cbranch_scc1 C_round")
    o("v_mov_b32 v40, 0x358637bd")
    for k in range(7):
        o(f"v_add_u32 v5, {512*k}, v0")
        o("v_lshrrev_b32 v6, 5, v5")
        o("v_and_b32 v7, 31, v5")
        o("v_add_u32 v8, s3, v6")
        o(f"v_cmp_gt_u32 vcc, {NB}, v6")
        o(f"s_mov_b32 s54, {N}")
        o("v_cmp_gt_u32 s[50:51], s54, v8")
        o("s_and_b64 vcc, vcc, s[50:51]")
        o("s_and_saveexec_b64 s[52:53], vcc")
        o("v_lshlrev_b32 v9, 9, v6")
        o("v_lshl_add_u32 v9, v7, 3, v9")
        o(f"ds_read_b64 v[10:11], v9 offset:{C_ACC}")
        o(f"ds_read_b64 v[12:13], v9 offset:{C_ACC+256}")
        o("v_lshlrev_b32 v9, 8, v6")
        o("v_lshl_add_u32 v9, v7, 3, v9")
        o(f"ds_read_b64 v[14:15], v9 offset:{C_XU}")
        o("v_lshlrev_b32 v9, 7, v8")
        o("v_lshl_add_u32 v9, v7, 2, v9")
        o("buffer_load_dword v16, v9, s[12:15], 0 offen")
        o("s_waitcnt vmcnt(0) lgkmcnt(0)")
        for h in range(2):
            o(f"v_add_f32 v{10+h}, v40, v{10+h}")
            o(f"v_rcp_f32 v{10+h}, v{10+h}")
            o("s_nop 0")
            o(f"v_fma_f32 v{14+h}, v{12+h}, v{10+h}, v{14+h}")
        o("v_cvt_pk_bf16_f32 v14, v14, v15")
        o("v_lshlrev_b32 v10, 16, v14")
        o("v_and_b32 v11, 0xffff0000, v14")
        o("v_max_f32 v10, 0, v10")
        o("v_max_f32 v11, 0, v11")
        o("v_lshlrev_b32 v12, 16, v16")
        o("v_and_b32 v13, 0xffff0000, v16")
        o("v_add_f32 v10, v10, v12")
        o("v_add_f32 v11, v11, v13")
        o("v_cvt_pk_bf16_f32 v10, v10, v11")
        o("buffer_store_dword v10, v9, s[20:23], 0 offen")
        o("s_mov_b64 exec, -1")
    if DBG:
        stamp()
        o("s_load_dwordx2 s[4:5], s[0:1], 80")
        o("s_waitcnt lgkmcnt(0)")
        srd(28, 4, 256)
        o("s_cmp_lg_u32 s2, 7")
        o("s_cbranch_scc1 C_end")
        o("v_lshlrev_b32 v5, 2, v0")
        o("s_add_u32 s86, s88, s70")
        o("s_add_u32 s84, s44, s70")
        for k in range(1, 9):
            o(f"s_sub_u32 s54, s{70+2*k}, s70")
            o("v_mov_b32 v6, s54")
            o(f"v_cmp_eq_u32 vcc, {k}, v0")
            o("s_and_saveexec_b64 s[52:53], vcc")
            o("buffer_store_dword v6, v5, s[28:31], 0 offen")
            o("s_mov_b64 exec, -1")
    lab("C_end")
    o("s_endpgm")

def kd(name, vg, sg):
    return f""".amdhsa_kernel {name}
  .amdhsa_next_free_vgpr {vg}
  .amdhsa_next_free_sgpr {sg}
  .amdhsa_accum_offset {vg}
  .amdhsa_group_segment_fixed_size 0
  .amdhsa_kernarg_size 96
  .amdhsa_user_sgpr_count 2
  .amdhsa_user_sgpr_kernarg_segment_ptr 1
  .amdhsa_system_sgpr_workgroup_id_x 1
.end_amdhsa_kernel
"""

def main():
    hdr = open("standalone__edge_featured_mpnn_gatedgcn__graph.s.ref").read().split("\n")
    head = [l for l in hdr if l.startswith(";") and "@launch" not in l and "Override" not in l and "grid=ceil" not in l]
    out = head[:]
    out.append(f"; @launch kernel={PART} grid=({NBK+9},1,1) block=(256,1,1) lds=27392")
    out.append(f"; @launch kernel={MAIN} grid=({NBK},1,1) block=(512,1,1) lds={C_LDS}")
    out.append('.amdgcn_target "amdgcn-amd-amdhsa--gfx950"')
    out.append(".text")
    global L
    for name, fn in ((PART, gen_part), (MAIN, gen_main)):
        L = []
        out.append(f".globl {name}")
        out.append(".p2align 8")
        out.append(f".type {name},@function")
        fn()
        out += L
    out.append('.section .rodata,"a"')
    out.append(".p2align 6")
    out.append(kd(PART, 96, 64))
    out.append(".p2align 6")
    out.append(kd(MAIN, 256, 100))
    open("standalone__edge_featured_mpnn_gatedgcn__graph.s", "w").write("\n".join(out) + "\n")
    print("LDS C:", C_LDS)

main()
```

```python
import sys, re, os
DBG = int(os.environ.get("DBG", "0"))
stamp_n = [0]
def stamp():
    if DBG:
        k = stamp_n[0]; stamp_n[0] += 1
        o("s_waitcnt lgkmcnt(0)")
        o(f"s_memtime s[{70+2*k}:{71+2*k}]")
        o("s_waitcnt lgkmcnt(0)")


N = 25000; E = 800000; NB = 98; NBK = 256; CH = 3125
MAIN = "standalone__edge_featured_mpnn_gatedgcn__graph_kernel"
PART = "gcn_part_kernel"

WS_REC = 0
WS_OFF = E * 8
WS_FRAG = WS_OFF + 257 * 256 * 4
WS_SIZE = 0x10000000

L = []
def o(s):
    m = re.match(r"(ds_\w+) (.*) offset:(\d+)$", s)
    if m and int(m.group(3)) > 65535:
        op, args, off = m.group(1), m.group(2), int(m.group(3))
        parts = [p.strip() for p in args.split(",")]
        ai = 1 if op.startswith("ds_read") or op.endswith("rtn_u32") else 0
        hi = off & ~0xfff
        L.append(f"    v_add_u32 v63, {hi}, {parts[ai]}")
        parts[ai] = "v63"
        L.append(f"    {op} {', '.join(parts)} offset:{off - hi}")
        return
    if s.startswith("v_readfirstlane") or s.startswith("v_readlane"):
        L.append("    s_nop 0")
    if s.startswith("v_cndmask"):
        L.append("    s_nop 1")
    L.append("    " + s)
def lab(s): L.append(s + ":")

def srd(d, b, size):
    o(f"s_mov_b32 s{d}, s{b}")
    o(f"s_mov_b32 s{d+1}, s{b+1}")
    o(f"s_mov_b32 s{d+2}, {size}")
    o(f"s_mov_b32 s{d+3}, 0x00020000")

def wave_scan(vi):
    o("s_nop 1")
    for sh in (1, 2, 4, 8):
        o(f"v_add_u32_dpp v{vi}, v{vi}, v{vi} row_shr:{sh} row_mask:0xf bank_mask:0xf bound_ctrl:0")
        o("s_nop 1")
    o(f"v_add_u32_dpp v{vi}, v{vi}, v{vi} row_bcast:15 row_mask:0xa bank_mask:0xf")
    o("s_nop 1")
    o(f"v_add_u32_dpp v{vi}, v{vi}, v{vi} row_bcast:31 row_mask:0xc bank_mask:0xf")
    o("s_nop 1")

def scan256(vin, vex, vt, lds_sc, swave, st, nbar_waves_extra=False):
    o(f"v_mov_b32 v{vex}, v{vin}")
    wave_scan(vex)
    o(f"v_readlane_b32 s{st}, v{vex}, 63")
    o(f"v_mov_b32 v{vt}, s{swave}")
    o(f"v_lshlrev_b32 v{vt}, 2, v{vt}")
    o(f"v_mov_b32 v{vt+1}, s{st}")
    o(f"ds_write_b32 v{vt}, v{vt+1} offset:{lds_sc}")
    o("s_waitcnt lgkmcnt(0)")
    o("s_barrier")
    o(f"v_mov_b32 v{vt}, 0")
    o(f"ds_read_b128 v[{vt}:{vt+3}], v{vt} offset:{lds_sc}")
    o("s_waitcnt lgkmcnt(0)")
    for k in range(3):
        o(f"v_readfirstlane_b32 s{st+1+k}, v{vt+k}")
    o(f"s_mov_b32 s{st}, 0")
    for k in range(3):
        o(f"s_cmp_gt_u32 s{swave}, {k}")
        o(f"s_cselect_b32 s{st+4}, s{st+1+k}, 0")
        o(f"s_add_u32 s{st}, s{st}, s{st+4}")
    o(f"v_sub_u32 v{vex}, v{vex}, v{vin}")
    o(f"v_add_u32 v{vex}, s{st}, v{vex}")

def gen_part():
    A_HIST = 0; A_OFFS = 1024; A_SC = 2048; A_STAGE = 2304
    lab(PART)
    o("s_load_dwordx2 s[4:5], s[0:1], 16")
    o("s_load_dwordx2 s[6:7], s[0:1], 24")
    o("s_load_dwordx2 s[8:9], s[0:1], 88")
    o(f"s_cmp_ge_u32 s2, {NBK}")
    o("s_cbranch_scc1 A_frag")
    o("s_waitcnt lgkmcnt(0)")
    srd(12, 4, E * 4)
    srd(16, 6, E * 4)
    srd(20, 8, WS_SIZE)
    o(f"s_mul_i32 s3, s2, {CH*4}")
    o("v_lshlrev_b32 v1, 2, v0")
    o("v_lshrrev_b32 v2, 6, v0")
    o("v_readfirstlane_b32 s26, v2")
    D0, S0, B0, R0 = 10, 23, 36, 49
    for i in range(13):
        o(f"s_add_u32 s33, s3, {i*1024}")
        o(f"buffer_load_dword v{D0+i}, v1, s[16:19], s33 offen")
    for i in range(13):
        o(f"s_add_u32 s33, s3, {i*1024}")
        o(f"buffer_load_dword v{S0+i}, v1, s[12:15], s33 offen")
    o("v_mov_b32 v3, 0")
    o(f"ds_write_b32 v1, v3 offset:{A_HIST}")
    o(f"v_cmp_gt_u32 s[24:25], {CH - 12*256}, v0")
    o("v_mov_b32 v4, 1")
    o("s_waitcnt lgkmcnt(0)")
    o("s_barrier")
    for i in range(13):
        o(f"s_waitcnt vmcnt({25-i})")
        o(f"v_mul_u32_u24 v{B0+i}, 0x29cc, v{D0+i}")
        o(f"v_lshrrev_b32 v{B0+i}, 20, v{B0+i}")
        o(f"v_lshlrev_b32 v{B0+i}, 2, v{B0+i}")
        if i == 12:
            o("s_mov_b64 exec, s[24:25]")
        o(f"ds_add_rtn_u32 v{R0+i}, v{B0+i}, v4 offset:{A_HIST}")
        if i == 12:
            o("s_mov_b64 exec, -1")
    o("s_waitcnt lgkmcnt(0)")
    o("s_barrier")
    o(f"ds_read_b32 v5, v1 offset:{A_HIST}")
    o("s_waitcnt lgkmcnt(0)")
    scan256(5, 6, 64, A_SC, 26, 27)
    o(f"ds_write_b32 v1, v6 offset:{A_OFFS}")
    o(f"v_lshlrev_b32 v7, 10, v0")
    o(f"s_lshl_b32 s27, s2, 2")
    o(f"s_add_u32 s27, s27, {WS_OFF}")
    o(f"buffer_store_dword v6, v7, s[20:23], s27 offen")
    o(f"v_mov_b32 v8, {CH}")
    o(f"v_mov_b32 v9, {256*1024}")
    o("v_cmp_eq_u32 vcc, 0, v0")
    o("s_and_saveexec_b64 s[28:29], vcc")
    o(f"buffer_store_dword v8, v9, s[20:23], s27 offen")
    o("s_mov_b64 exec, -1")
    o("s_waitcnt lgkmcnt(0)")
    o("s_barrier")
    o("s_waitcnt vmcnt(0)")
    for i in range(13):
        o(f"ds_read_b32 v{64+i}, v{B0+i} offset:{A_OFFS}")
    o(f"s_mul_i32 s30, s2, {CH}")
    for i in range(13):
        o(f"s_waitcnt lgkmcnt({12-i})")
        o(f"v_add_u32 v{64+i}, v{64+i}, v{R0+i}")
        o(f"v_lshlrev_b32 v{64+i}, 3, v{64+i}")
        o(f"v_mul_u32_u24 v2, {NB//2}, v{B0+i}")
        o(f"v_lshrrev_b32 v2, 1, v2")
        o(f"v_sub_u32 v2, v{D0+i}, v2")
        o(f"v_lshlrev_b32 v2, 24, v2")
        o(f"v_add_u32 v3, {i*256}, v0")
        o(f"v_add_u32 v3, s30, v3")
        o(f"v_or_b32 v{D0+i}, v2, v3")
        if i == 12:
            o("s_mov_b64 exec, s[24:25]")
        o(f"v_mov_b32 v2, v{D0+i}")
        o(f"v_mov_b32 v3, v{S0+i}")
        o(f"ds_write_b64 v{64+i}, v[2:3] offset:{A_STAGE}")
        if i == 12:
            o("s_mov_b64 exec, -1")
    o("s_waitcnt lgkmcnt(0)")
    o("s_barrier")
    o("v_lshlrev_b32 v1, 3, v0")
    for i in range(13):
        o(f"ds_read_b64 v[{64+2*i}:{65+2*i}], v1 offset:{A_STAGE + i*2048}")
    o(f"s_mul_i32 s31, s2, {CH*8}")
    for i in range(13):
        o(f"s_waitcnt lgkmcnt({12-i})")
        if i == 12:
            o("s_mov_b64 exec, s[24:25]")
        o(f"s_add_u32 s32, s31, {i*2048}")
        o(f"buffer_store_dwordx2 v[{64+2*i}:{65+2*i}], v1, s[20:23], s32 offen")
    o("s_endpgm")

    lab("A_frag")
    o(f"s_sub_u32 s3, s2, {NBK}")
    o("v_lshrrev_b32 v2, 6, v0")
    o("v_readfirstlane_b32 s26, v2")
    o("s_lshl_b32 s3, s3, 2")
    o("s_add_u32 s3, s3, s26")
    o("s_cmp_ge_u32 s3, 36")
    o("s_cbranch_scc1 A_end")
    o("s_load_dwordx2 s[34:35], s[0:1], 32")
    o("s_load_dwordx2 s[36:37], s[0:1], 40")
    o("s_load_dwordx2 s[38:39], s[0:1], 48")
    o("s_load_dwordx2 s[40:41], s[0:1], 56")
    o("s_load_dwordx2 s[42:43], s[0:1], 64")
    o("s_waitcnt lgkmcnt(0)")
    srd(20, 8, WS_SIZE)
    o("s_mov_b64 s[44:45], s[36:37]")
    o("s_mov_b32 s27, s3")
    o("s_cmp_ge_u32 s3, 8")
    o("s_cselect_b64 s[44:45], s[42:43], s[44:45]")
    o("s_cselect_b32 s28, 8, 0")
    o("s_sub_u32 s27, s3, s28")
    o("s_cmp_ge_u32 s3, 16")
    o("s_cselect_b64 s[44:45], s[38:39], s[44:45]")
    o("s_cselect_b32 s28, 16, s28")
    o("s_sub_u32 s27, s3, s28")
    o("s_cmp_ge_u32 s3, 20")
    o("s_cselect_b64 s[44:45], s[34:35], s[44:45]")
    o("s_cselect_b32 s28, 20, s28")
    o("s_sub_u32 s27, s3, s28")
    o("s_cmp_ge_u32 s3, 28")
    o("s_cselect_b64 s[44:45], s[40:41], s[44:45]")
    o("s_cselect_b32 s28, 28, s28")
    o("s_sub_u32 s27, s3, s28")
    srd(12, 44, 64 * 64 * 2)
    o("v_and_b32 v1, 63, v0")
    o("v_and_b32 v2, 15, v1")
    o("v_lshrrev_b32 v3, 4, v1")
    o("s_lshl_b32 s29, s3, 10")
    o(f"s_add_u32 s29, s29, {WS_FRAG}")
    o("v_lshlrev_b32 v4, 4, v1")
    o("s_cmp_eq_u32 s28, 16")
    o("s_cbranch_scc1 A_fragc")
    o("s_lshr_b32 s30, s27, 1")
    o("s_and_b32 s31, s27, 1")
    o("s_lshl_b32 s30, s30, 5")
    o("s_lshl_b32 s31, s31, 12")
    o("s_add_u32 s30, s30, s31")
    o("v_lshlrev_b32 v5, 10, v3")
    o("v_lshl_add_u32 v5, v2, 1, v5")
    for j in range(8):
        o(f"buffer_load_ushort v{8+j}, v5, s[12:15], s30 offen offset:{j*128}")
    o("s_waitcnt vmcnt(0)")
    for j in range(4):
        o(f"v_lshl_or_b32 v{16+j}, v{9+2*j}, 16, v{8+2*j}")
    o("buffer_store_dwordx4 v[16:19], v4, s[20:23], s29 offen")
    o("s_endpgm")
    lab("A_fragc")
    o("s_lshl_b32 s30, s27, 5")
    o("v_lshlrev_b32 v5, 9, v3")
    o("v_lshl_add_u32 v5, v2, 1, v5")
    for j in range(4):
        o(f"buffer_load_ushort v{8+j}, v5, s[12:15], s30 offen offset:{j*128}")
    o("s_waitcnt vmcnt(0)")
    for j in range(2):
        o(f"v_lshl_or_b32 v{16+j}, v{9+2*j}, 16, v{8+2*j}")
    o("v_lshlrev_b32 v4, 3, v1")
    o("buffer_store_dwordx2 v[16:17], v4, s[20:23], s29 offen")
    lab("A_end")
    o("s_endpgm")

CAP = 4096
C_REC = 0
C_ACC = C_REC + CAP * 8
C_XA = C_ACC + 112 * 512
C_XU = C_XA + 112 * 256
C_CNT = C_XU + 112 * 256
C_NOFF = C_CNT + 512
C_SC = C_NOFF + 512
C_TL = C_SC + 256
TLN = 384
C_LDS = C_TL + 8 * TLN * 4
WF = 64
SLOT = [136, 148, 160]
DG, DH, DEN, NUM, CXA = 172, 188, 204, 220, 236

def frag_load(first, cnt, dst):
    for k in range(cnt):
        o(f"s_add_u32 s40, s39, {(first+k)*1024}")
        o(f"buffer_load_dwordx4 v[{dst+4*k}:{dst+4*k+3}], v4, s[16:19], s40 offen")

def gen_main():
    lab(MAIN)
    o("s_load_dwordx2 s[4:5], s[0:1], 0")
    o("s_load_dwordx2 s[6:7], s[0:1], 8")
    o("s_load_dwordx2 s[8:9], s[0:1], 88")
    o("s_load_dwordx2 s[10:11], s[0:1], 72")
    o(f"s_cmp_ge_u32 s2, {NBK}")
    o("s_cbranch_scc1 C_end")
    o("s_waitcnt lgkmcnt(0)")
    stamp()
    srd(12, 4, N * 128)
    srd(24, 6, E * 32)
    srd(16, 8, WS_SIZE)
    srd(20, 10, N * 128)
    o(f"s_mul_i32 s3, s2, {NB}")
    o("v_and_b32 v3, 63, v0")
    o("v_and_b32 v1, 15, v0")
    o("v_bfe_u32 v2, v0, 4, 2")
    o("v_lshrrev_b32 v5, 6, v0")
    o("v_readfirstlane_b32 s38, v5")
    o("v_lshlrev_b32 v4, 4, v3")
    o(f"s_mov_b32 s39, {WS_FRAG}")
    o("s_cmp_ge_u32 s38, 7")
    o("s_cbranch_scc1 C_p0b")
    frag_load(20, 16, WF)
    o("s_lshl_b32 s41, s38, 4")
    o("s_add_u32 s41, s41, s3")
    o("v_add_u32 v6, s41, v1")
    o("v_lshlrev_b32 v6, 7, v6")
    o("v_lshl_add_u32 v6, v2, 4, v6")
    o("buffer_load_dwordx4 v[8:11], v6, s[12:15], 0 offen")
    o("buffer_load_dwordx4 v[12:15], v6, s[12:15], 0 offen offset:64")
    o("s_waitcnt vmcnt(0)")
    for nt in range(8):
        o(f"v_mfma_f32_16x16x32_bf16 v[{16+4*nt}:{19+4*nt}], v[8:11], v[{WF+8*nt}:{WF+8*nt+3}], 0")
    for nt in range(8):
        o(f"v_mfma_f32_16x16x32_bf16 v[{16+4*nt}:{19+4*nt}], v[12:15], v[{WF+8*nt+4}:{WF+8*nt+7}], v[{16+4*nt}:{19+4*nt}]")
    o("s_nop 7")
    o("s_nop 7")
    o("v_lshlrev_b32 v6, 10, v2")
    o("v_lshl_add_u32 v6, v1, 2, v6")
    o("s_lshl_b32 s41, s38, 12")
    o("v_add_u32 v6, s41, v6")
    for nt in range(8):
        base = C_XA if nt < 4 else C_XU
        for r in range(0, 4, 2):
            a = 16 + 4 * nt + r
            o(f"v_cvt_pk_bf16_f32 v7, v{a}, v{a+1}")
            o(f"v_lshlrev_b32 v{a}, 16, v7")
            o(f"v_and_b32 v{a+1}, 0xffff0000, v7")
            o(f"ds_write_b32 v6, v{a} offset:{base + (nt%4)*64 + r*256}")
            o(f"ds_write_b32 v6, v{a+1} offset:{base + (nt%4)*64 + (r+1)*256}")
    lab("C_p0b")
    frag_load(0, 16, WF)
    o("v_lshlrev_b32 v5, 3, v3")
    for k in range(4):
        o(f"s_add_u32 s40, s39, {(16+k)*1024}")
        o(f"buffer_load_dwordx2 v[{WF+64+2*k}:{WF+64+2*k+1}], v5, s[16:19], s40 offen")
    o("v_mov_b32 v8, 0")
    o("v_mov_b32 v9, 0")
    o("v_mov_b32 v10, 0")
    o("v_mov_b32 v11, 0")
    o("v_lshlrev_b32 v6, 4, v0")
    for k in range(7):
        o(f"ds_write_b128 v6, v[8:11] offset:{C_ACC + k*8192}")
    o("v_lshlrev_b32 v6, 2, v0")
    o("s_lshl_b32 s41, s2, 10")
    o(f"s_add_u32 s41, s41, {WS_OFF}")
    o("s_cmp_ge_u32 s38, 4")
    o("s_cbranch_scc1 C_p0c")
    o("buffer_load_dword v20, v6, s[16:19], s41 offen")
    o("buffer_load_dword v21, v6, s[16:19], s41 offen offset:1024")
    o("s_waitcnt vmcnt(0)")
    o("v_sub_u32 v21, v21, v20")
    lab("C_p0c")
    o("s_cmp_ge_u32 s38, 4")
    o("s_cbranch_scc0 C_p0d")
    o("v_mov_b32 v20, 0")
    o("v_mov_b32 v21, 0")
    lab("C_p0d")
    scan256(21, 22, 24, C_SC, 38, 42)
    o("v_mov_b32 v24, 0")
    o(f"ds_read_b128 v[24:27], v24 offset:{C_SC}")
    o("s_waitcnt lgkmcnt(0)")
    o("v_add_u32 v24, v24, v25")
    o("v_add_u32 v26, v26, v27")
    o("v_add_u32 v24, v24, v26")
    o("v_readfirstlane_b32 s47, v24")
    o(f"v_mul_u32_u24 v23, {CH*8}, v0")
    o("v_lshl_add_u32 v23, v20, 3, v23")
    o("s_mov_b32 s48, 0")
    stamp()
    lab("C_round")
    o("s_cmp_ge_u32 s38, 4")
    o("s_cbranch_scc1 C_cp_done")
    o("v_mov_b32 v28, 0")
    lab("C_cp_loop")
    o("v_cmp_lt_u32 vcc, v28, v21")
    o("s_cbranch_vccz C_cp_done")
    for u in range(4):
        o(f"v_add_u32 v{30+u}, {u}, v28")
        o(f"v_cmp_lt_u32 s[{50+2*u}:{51+2*u}], v{30+u}, v21")
        o(f"v_add_u32 v{30+u}, v{30+u}, v22")
        o(f"v_subrev_u32 v{30+u}, s48, v{30+u}")
        o(f"v_cmp_gt_u32 vcc, {CAP}, v{30+u}")
        o(f"s_and_b64 s[{50+2*u}:{51+2*u}], s[{50+2*u}:{51+2*u}], vcc")
        o(f"v_lshlrev_b32 v{30+u}, 3, v{30+u}")
        o(f"v_lshl_add_u32 v29, v28, 3, v23")
        o(f"s_mov_b64 exec, s[{50+2*u}:{51+2*u}]")
        o(f"buffer_load_dwordx2 v[{36+2*u}:{37+2*u}], v29, s[16:19], 0 offen offset:{8*u}")
        o("s_mov_b64 exec, -1")
    for u in range(4):
        o(f"s_waitcnt vmcnt({3-u})")
        o(f"s_mov_b64 exec, s[{50+2*u}:{51+2*u}]")
        o(f"ds_write_b64 v{30+u}, v[{36+2*u}:{37+2*u}] offset:{C_REC}")
        o("s_mov_b64 exec, -1")
    o("v_add_u32 v28, 4, v28")
    o("s_branch C_cp_loop")
    lab("C_cp_done")
    stamp()
    o("v_lshlrev_b32 v6, 2, v0")
    o("v_mov_b32 v7, 0")
    o("v_cmp_gt_u32 vcc, 128, v0")
    o("s_and_saveexec_b64 s[50:51], vcc")
    o(f"ds_write_b32 v6, v7 offset:{C_CNT}")
    o("s_mov_b64 exec, -1")
    o("s_waitcnt vmcnt(0) lgkmcnt(0)")
    o("s_barrier")
    o("s_sub_u32 s49, s47, s48")
    o(f"s_min_u32 s49, s49, {CAP}")
    o("v_lshlrev_b32 v6, 3, v0")
    o("v_mov_b32 v7, 1")
    for k in range(8):
        o(f"v_add_u32 v5, {512*k}, v0")
        o(f"v_cmp_gt_u32 s[{50+2*k}:{51+2*k}], s49, v5")
        o(f"s_mov_b64 exec, s[{50+2*k}:{51+2*k}]")
        o(f"ds_read_b64 v[{28+2*k}:{29+2*k}], v6 offset:{C_REC + 4096*k}")
        o("s_mov_b64 exec, -1")
    o("s_waitcnt lgkmcnt(0)")
    for k in range(8):
        o(f"v_lshrrev_b32 v5, 24, v{28+2*k}")
        o("v_lshlrev_b32 v5, 2, v5")
        o(f"s_mov_b64 exec, s[{50+2*k}:{51+2*k}]")
        o(f"ds_add_rtn_u32 v{44+k}, v5, v7 offset:{C_CNT}")
        o("s_mov_b64 exec, -1")
    o("s_waitcnt lgkmcnt(0)")
    o("s_barrier")
    o("s_cmp_lg_u32 s38, 0")
    o("s_cbranch_scc1 C_scan_done")
    o("v_lshlrev_b32 v6, 3, v0")
    o(f"ds_read_b64 v[8:9], v6 offset:{C_CNT}")
    o("s_waitcnt lgkmcnt(0)")
    o("v_add_u32 v10, v8, v9")
    o("v_mov_b32 v12, v10")
    wave_scan(12)
    o("v_sub_u32 v12, v12, v10")
    o("v_add_u32 v13, v12, v8")
    o(f"ds_write_b64 v6, v[12:13] offset:{C_NOFF}")
    o("s_waitcnt lgkmcnt(0)")
    lab("C_scan_done")
    o("s_barrier")
    for k in range(8):
        o(f"v_lshrrev_b32 v5, 24, v{28+2*k}")
        o("v_lshlrev_b32 v5, 2, v5")
        o(f"s_mov_b64 exec, s[{50+2*k}:{51+2*k}]")
        o(f"ds_read_b32 v{52+k}, v5 offset:{C_NOFF}")
        o("s_mov_b64 exec, -1")
    o("s_waitcnt lgkmcnt(0)")
    for k in range(8):
        o(f"v_add_u32 v5, v{52+k}, v{44+k}")
        o("v_lshlrev_b32 v5, 3, v5")
        o(f"s_mov_b64 exec, s[{50+2*k}:{51+2*k}]")
        o(f"ds_write_b64 v5, v[{28+2*k}:{29+2*k}] offset:{C_REC}")
        o("s_mov_b64 exec, -1")
    o("s_waitcnt lgkmcnt(0)")
    o("s_barrier")
    stamp()
    o("v_lshlrev_b32 v5, 3, v3")
    o("v_add_u32 v5, s38, v5")
    o(f"v_cmp_gt_u32 vcc, {NB}, v5")
    o("v_lshlrev_b32 v6, 2, v5")
    o("v_min_u32 v6, 508, v6")
    o(f"ds_read_b32 v8, v6 offset:{C_NOFF}")
    o(f"ds_read_b32 v9, v6 offset:{C_CNT}")
    o("s_waitcnt lgkmcnt(0)")
    o("v_cndmask_b32 v9, 0, v9, vcc")
    o("v_add_u32 v10, 15, v9")
    o("v_lshrrev_b32 v10, 4, v10")
    o("v_mov_b32 v11, v10")
    wave_scan(11)
    o("v_readlane_b32 s44, v11, 63")
    o("v_sub_u32 v11, v11, v10")
    o(f"s_mul_i32 s45, s38, {TLN*4}")
    o(f"s_add_u32 s45, s45, {C_TL}")
    o("v_lshlrev_b32 v11, 2, v11")
    o("v_add_u32 v11, s45, v11")
    o("v_mov_b32 v12, 0")
    o("v_lshlrev_b32 v13, 17, v5")
    lab("C_tl_loop")
    o("v_cmp_lt_u32 vcc, v12, v10")
    o("s_cbranch_vccz C_tl_done")
    o("s_and_saveexec_b64 s[50:51], vcc")
    o("v_lshlrev_b32 v14, 4, v12")
    o("v_sub_u32 v15, v9, v14")
    o("v_min_u32 v15, 16, v15")
    o("v_add_u32 v14, v14, v8")
    o("v_lshl_or_b32 v14, v15, 12, v14")
    o("v_or_b32 v14, v14, v13")
    o("v_cmp_eq_u32 vcc, 0, v12")
    o("v_cndmask_b32 v15, 0, 1, vcc")
    o("v_lshl_or_b32 v14, v15, 24, v14")
    o("v_add_u32 v15, 1, v12")
    o("v_cmp_eq_u32 vcc, v15, v10")
    o("v_cndmask_b32 v15, 0, 1, vcc")
    o("v_lshl_or_b32 v14, v15, 25, v14")
    o("ds_write_b32 v11, v14")
    o("v_add_u32 v11, 4, v11")
    o("v_add_u32 v12, 1, v12")
    o("s_mov_b64 exec, -1")
    o("s_branch C_tl_loop")
    lab("C_tl_done")
    o("s_waitcnt lgkmcnt(0)")
    stamp()
    for r in range(4):
        o(f"v_lshl_add_u32 v{16+r}, v2, 2, {r}")
    o(f"v_lshlrev_b32 v20, 2, v1")
    o(f"v_add_u32 v20, {C_XA}, v20")
    o(f"v_lshlrev_b32 v21, 2, v1")
    o(f"v_add_u32 v21, {C_ACC}, v21")
    o("v_lshlrev_b32 v22, 4, v2")
    o("v_lshlrev_b32 v23, 3, v2")
    o("v_mov_b32 v24, s45")
    for k in range(16):
        o(f"v_mov_b32 v{DEN+k}, 0")
        o(f"v_mov_b32 v{NUM+k}, 0")
    o("s_cmp_eq_u32 s44, 0")
    o("s_cbranch_scc1 C_loop_end")
    o("ds_read_b32 v25, v24")
    o("v_add_u32 v24, 4, v24")
    o("s_mov_b32 s46, 0")
    o("s_mov_b32 s88, 0")

    def prefetch(slot):
        b = SLOT[slot]
        o("s_waitcnt lgkmcnt(0)")
        o("v_readfirstlane_b32 s62, v25")
        o("ds_read_b32 v25, v24")
        o("v_add_u32 v24, 4, v24")
        o("s_bfe_u32 s63, s62, 0x5000c")
        o("s_and_b32 s64, s62, 0xfff")
        o("s_sub_u32 s63, s63, 1")
        o("v_min_u32 v26, s63, v1")
        o("v_add_u32 v26, s64, v26")
        o("v_lshlrev_b32 v26, 3, v26")
        o(f"ds_read_b64 v[26:27], v26 offset:{C_REC}")
        o("s_waitcnt lgkmcnt(0)")
        o("v_lshl_add_u32 v27, v27, 7, v22")
        o("v_and_b32 v26, 0xfffff, v26")
        o("v_lshl_add_u32 v26, v26, 5, v23")
        if DBG == 2:
            o("v_mov_b32 v26, v23")
        o(f"buffer_load_dwordx4 v[{b}:{b+3}], v27, s[12:15], 0 offen")
        o(f"buffer_load_dwordx4 v[{b+4}:{b+7}], v27, s[12:15], 0 offen offset:64")
        o(f"buffer_load_dwordx2 v[{b+8}:{b+9}], v26, s[24:27], 0 offen")

    cnt_lbl = [0]
    def compute(slot):
        b = SLOT[slot]
        u = cnt_lbl[0]; cnt_lbl[0] += 1
        o("s_bitcmp1_b32 s60, 24")
        o(f"s_cbranch_scc0 C_nf{u}")
        o("s_bfe_u32 s65, s60, 0x70011")
        o("s_lshl_b32 s65, s65, 8")
        o("v_add_u32 v28, s65, v20")
        for nt in range(4):
            for r in range(4):
                o(f"ds_read_b32 v{CXA+4*nt+r}, v28 offset:{64*nt}")
        o("s_waitcnt lgkmcnt(0)")
        lab(f"C_nf{u}")
        o("s_bfe_u32 s66, s60, 0x5000c")
        for r in range(4):
            o(f"v_cmp_gt_u32 s[{50+2*r}:{51+2*r}], s66, v{16+r}")
        o("s_waitcnt vmcnt(6)")
        if DBG:
            o("s_memtime s[84:85]")
            o("s_waitcnt lgkmcnt(0)")
        for nt in range(4):
            o(f"v_mfma_f32_16x16x16_bf16 v[{DG+4*nt}:{DG+4*nt+3}], v[{b+8}:{b+9}], v[{WF+64+2*nt}:{WF+64+2*nt+1}], v[{CXA+4*nt}:{CXA+4*nt+3}]")
        for nt in range(4):
            o(f"v_mfma_f32_16x16x32_bf16 v[{DH+4*nt}:{DH+4*nt+3}], v[{b}:{b+3}], v[{WF+32+8*nt}:{WF+32+8*nt+3}], 0")
        for nt in range(4):
            o(f"v_mfma_f32_16x16x32_bf16 v[{DG+4*nt}:{DG+4*nt+3}], v[{b}:{b+3}], v[{WF+8*nt}:{WF+8*nt+3}], v[{DG+4*nt}:{DG+4*nt+3}]")
        for nt in range(4):
            o(f"v_mfma_f32_16x16x32_bf16 v[{DH+4*nt}:{DH+4*nt+3}], v[{b+4}:{b+7}], v[{WF+32+8*nt+4}:{WF+32+8*nt+7}], v[{DH+4*nt}:{DH+4*nt+3}]")
        for nt in range(4):
            o(f"v_mfma_f32_16x16x32_bf16 v[{DG+4*nt}:{DG+4*nt+3}], v[{b+4}:{b+7}], v[{WF+8*nt+4}:{WF+8*nt+7}], v[{DG+4*nt}:{DG+4*nt+3}]")
        o("s_nop 7")
        for k in range(16):
            o(f"v_mul_f32 v{DG+k}, 0xbfb8aa3b, v{DG+k}")
        for k in range(16):
            o(f"v_exp_f32 v{DG+k}, v{DG+k}")
        for k in range(16):
            o(f"v_add_f32 v{DG+k}, 1.0, v{DG+k}")
        for k in range(16):
            o(f"v_rcp_f32 v{DG+k}, v{DG+k}")
        o("s_nop 0")
        if DBG:
            o("v_mov_b32 v62, v{DG}".format(DG=DG))
            o("s_memtime s[86:87]")
            o("s_waitcnt lgkmcnt(0)")
            o("s_sub_u32 s86, s86, s84")
            o("s_add_u32 s88, s88, s86")
        for r in range(4):
            o(f"s_mov_b64 exec, s[{50+2*r}:{51+2*r}]")
            for nt in range(4):
                k = 4 * nt + r
                o(f"v_add_f32 v{DEN+k}, v{DEN+k}, v{DG+k}")
                o(f"v_fmac_f32 v{NUM+k}, v{DG+k}, v{DH+k}")
        o("s_mov_b64 exec, -1")
        o("s_bitcmp1_b32 s60, 25")
        o(f"s_cbranch_scc0 C_nl{u}")
        o("s_bfe_u32 s65, s60, 0x70011")
        o("s_lshl_b32 s65, s65, 9")
        o("v_add_u32 v28, s65, v21")
        for nt in range(4):
            for base in (DEN, NUM):
                a = base + 4 * nt
                o(f"v_add_f32 v{a}, v{a}, v{a+1}")
                o(f"v_add_f32 v{a+2}, v{a+2}, v{a+3}")
                o(f"v_add_f32 v{a}, v{a}, v{a+2}")
                o(f"ds_add_f32 v28, v{a} offset:{64*nt + (256 if base == NUM else 0)}")
        o("s_waitcnt lgkmcnt(0)")
        for k in range(16):
            o(f"v_mov_b32 v{DEN+k}, 0")
            o(f"v_mov_b32 v{NUM+k}, 0")
        lab(f"C_nl{u}")

    prefetch(0)
    o("s_mov_b32 s60, s62")
    prefetch(1)
    o("s_mov_b32 s61, s62")
    lab("C_loop")
    for u in range(3):
        prefetch((u + 2) % 3)
        compute(u)
        o("s_mov_b32 s60, s61")
        o("s_mov_b32 s61, s62")
        o("s_add_u32 s46, s46, 1")
        o("s_cmp_ge_u32 s46, s44")
        o("s_cbranch_scc1 C_loop_end")
    o("s_branch C_loop")
    lab("C_loop_end")
    o("s_waitcnt vmcnt(0) lgkmcnt(0)")
    stamp()
    o("s_barrier")
    o(f"s_add_u32 s48, s48, {CAP}")
    o("s_cmp_lt_u32 s48, s47")
    o("s_cbranch_scc1 C_round")
    o("v_mov_b32 v40, 0x358637bd")
    for k in range(7):
        o(f"v_add_u32 v5, {512*k}, v0")
        o("v_lshrrev_b32 v6, 5, v5")
        o("v_and_b32 v7, 31, v5")
        o("v_add_u32 v8, s3, v6")
        o(f"v_cmp_gt_u32 vcc, {NB}, v6")
        o(f"s_mov_b32 s54, {N}")
        o("v_cmp_gt_u32 s[50:51], s54, v8")
        o("s_and_b64 vcc, vcc, s[50:51]")
        o("s_and_saveexec_b64 s[52:53], vcc")
        o("v_lshlrev_b32 v9, 9, v6")
        o("v_lshl_add_u32 v9, v7, 3, v9")
        o(f"ds_read_b64 v[10:11], v9 offset:{C_ACC}")
        o(f"ds_read_b64 v[12:13], v9 offset:{C_ACC+256}")
        o("v_lshlrev_b32 v9, 8, v6")
        o("v_lshl_add_u32 v9, v7, 3, v9")
        o(f"ds_read_b64 v[14:15], v9 offset:{C_XU}")
        o("v_lshlrev_b32 v9, 7, v8")
        o("v_lshl_add_u32 v9, v7, 2, v9")
        o("buffer_load_dword v16, v9, s[12:15], 0 offen")
        o("s_waitcnt vmcnt(0) lgkmcnt(0)")
        for h in range(2):
            o(f"v_add_f32 v{10+h}, v40, v{10+h}")
            o(f"v_rcp_f32 v{10+h}, v{10+h}")
            o("s_nop 0")
            o(f"v_fma_f32 v{14+h}, v{12+h}, v{10+h}, v{14+h}")
        o("v_cvt_pk_bf16_f32 v14, v14, v15")
        o("v_lshlrev_b32 v10, 16, v14")
        o("v_and_b32 v11, 0xffff0000, v14")
        o("v_max_f32 v10, 0, v10")
        o("v_max_f32 v11, 0, v11")
        o("v_lshlrev_b32 v12, 16, v16")
        o("v_and_b32 v13, 0xffff0000, v16")
        o("v_add_f32 v10, v10, v12")
        o("v_add_f32 v11, v11, v13")
        o("v_cvt_pk_bf16_f32 v10, v10, v11")
        o("buffer_store_dword v10, v9, s[20:23], 0 offen")
        o("s_mov_b64 exec, -1")
    if DBG:
        stamp()
        o("s_load_dwordx2 s[4:5], s[0:1], 80")
        o("s_waitcnt lgkmcnt(0)")
        srd(28, 4, 256)
        o("s_cmp_lg_u32 s2, 7")
        o("s_cbranch_scc1 C_end")
        o("v_lshlrev_b32 v5, 2, v0")
        o("s_add_u32 s86, s88, s70")
        o("s_add_u32 s84, s44, s70")
        for k in range(1, 9):
            o(f"s_sub_u32 s54, s{70+2*k}, s70")
            o("v_mov_b32 v6, s54")
            o(f"v_cmp_eq_u32 vcc, {k}, v0")
            o("s_and_saveexec_b64 s[52:53], vcc")
            o("buffer_store_dword v6, v5, s[28:31], 0 offen")
            o("s_mov_b64 exec, -1")
    lab("C_end")
    o("s_endpgm")

def kd(name, vg, sg):
    return f""".amdhsa_kernel {name}
  .amdhsa_next_free_vgpr {vg}
  .amdhsa_next_free_sgpr {sg}
  .amdhsa_accum_offset {vg}
  .amdhsa_group_segment_fixed_size 0
  .amdhsa_kernarg_size 96
  .amdhsa_user_sgpr_count 2
  .amdhsa_user_sgpr_kernarg_segment_ptr 1
  .amdhsa_system_sgpr_workgroup_id_x 1
.end_amdhsa_kernel
"""

def main():
    hdr = open("standalone__edge_featured_mpnn_gatedgcn__graph.s.ref").read().split("\n")
    head = [l for l in hdr if l.startswith(";") and "@launch" not in l and "Override" not in l and "grid=ceil" not in l]
    out = head[:]
    out.append(f"; @launch kernel={PART} grid=({NBK+9},1,1) block=(256,1,1) lds=27392")
    out.append(f"; @launch kernel={MAIN} grid=({NBK},1,1) block=(512,1,1) lds={C_LDS}")
    out.append('.amdgcn_target "amdgcn-amd-amdhsa--gfx950"')
    out.append(".text")
    global L
    for name, fn in ((PART, gen_part), (MAIN, gen_main)):
        L = []
        out.append(f".globl {name}")
        out.append(".p2align 8")
        out.append(f".type {name},@function")
        fn()
        out += L
    out.append('.section .rodata,"a"')
    out.append(".p2align 6")
    out.append(kd(PART, 96, 64))
    out.append(".p2align 6")
    out.append(kd(MAIN, 256, 100))
    open("standalone__edge_featured_mpnn_gatedgcn__graph.s", "w").write("\n".join(out) + "\n")
    print("LDS C:", C_LDS)

main()
```

```python
import sys, re, os
DBG = int(os.environ.get("DBG", "0"))
stamp_n = [0]
def stamp():
    if DBG:
        k = stamp_n[0]; stamp_n[0] += 1
        o("s_waitcnt lgkmcnt(0)")
        o(f"s_memtime s[{70+2*k}:{71+2*k}]")
        o("s_waitcnt lgkmcnt(0)")


N = 25000; E = 800000; NB = 98; NBK = 256; CH = 3125
MAIN = "standalone__edge_featured_mpnn_gatedgcn__graph_kernel"
PART = "gcn_part_kernel"

WS_REC = 0
WS_OFF = E * 8
WS_FRAG = WS_OFF + 257 * 256 * 4
WS_SIZE = 0x10000000

L = []
def o(s):
    m = re.match(r"(ds_\w+) (.*) offset:(\d+)$", s)
    if m and int(m.group(3)) > 65535:
        op, args, off = m.group(1), m.group(2), int(m.group(3))
        parts = [p.strip() for p in args.split(",")]
        ai = 1 if op.startswith("ds_read") or op.endswith("rtn_u32") else 0
        hi = off & ~0xfff
        L.append(f"    v_add_u32 v63, {hi}, {parts[ai]}")
        parts[ai] = "v63"
        L.append(f"    {op} {', '.join(parts)} offset:{off - hi}")
        return
    if s.startswith("v_readfirstlane") or s.startswith("v_readlane"):
        L.append("    s_nop 0")
    if s.startswith("v_cndmask"):
        L.append("    s_nop 1")
    L.append("    " + s)
def lab(s): L.append(s + ":")

def srd(d, b, size):
    o(f"s_mov_b32 s{d}, s{b}")
    o(f"s_mov_b32 s{d+1}, s{b+1}")
    o(f"s_mov_b32 s{d+2}, {size}")
    o(f"s_mov_b32 s{d+3}, 0x00020000")

def wave_scan(vi):
    o("s_nop 1")
    for sh in (1, 2, 4, 8):
        o(f"v_add_u32_dpp v{vi}, v{vi}, v{vi} row_shr:{sh} row_mask:0xf bank_mask:0xf bound_ctrl:0")
        o("s_nop 1")
    o(f"v_add_u32_dpp v{vi}, v{vi}, v{vi} row_bcast:15 row_mask:0xa bank_mask:0xf")
    o("s_nop 1")
    o(f"v_add_u32_dpp v{vi}, v{vi}, v{vi} row_bcast:31 row_mask:0xc bank_mask:0xf")
    o("s_nop 1")

def scan256(vin, vex, vt, lds_sc, swave, st, nbar_waves_extra=False):
    o(f"v_mov_b32 v{vex}, v{vin}")
    wave_scan(vex)
    o(f"v_readlane_b32 s{st}, v{vex}, 63")
    o(f"v_mov_b32 v{vt}, s{swave}")
    o(f"v_lshlrev_b32 v{vt}, 2, v{vt}")
    o(f"v_mov_b32 v{vt+1}, s{st}")
    o(f"ds_write_b32 v{vt}, v{vt+1} offset:{lds_sc}")
    o("s_waitcnt lgkmcnt(0)")
    o("s_barrier")
    o(f"v_mov_b32 v{vt}, 0")
    o(f"ds_read_b128 v[{vt}:{vt+3}], v{vt} offset:{lds_sc}")
    o("s_waitcnt lgkmcnt(0)")
    for k in range(3):
        o(f"v_readfirstlane_b32 s{st+1+k}, v{vt+k}")
    o(f"s_mov_b32 s{st}, 0")
    for k in range(3):
        o(f"s_cmp_gt_u32 s{swave}, {k}")
        o(f"s_cselect_b32 s{st+4}, s{st+1+k}, 0")
        o(f"s_add_u32 s{st}, s{st}, s{st+4}")
    o(f"v_sub_u32 v{vex}, v{vex}, v{vin}")
    o(f"v_add_u32 v{vex}, s{st}, v{vex}")

def gen_part():
    A_HIST = 0; A_OFFS = 1024; A_SC = 2048; A_STAGE = 2304
    lab(PART)
    o("s_load_dwordx2 s[4:5], s[0:1], 16")
    o("s_load_dwordx2 s[6:7], s[0:1], 24")
    o("s_load_dwordx2 s[8:9], s[0:1], 88")
    o(f"s_cmp_ge_u32 s2, {NBK}")
    o("s_cbranch_scc1 A_frag")
    o("s_waitcnt lgkmcnt(0)")
    srd(12, 4, E * 4)
    srd(16, 6, E * 4)
    srd(20, 8, WS_SIZE)
    o(f"s_mul_i32 s3, s2, {CH*4}")
    o("v_lshlrev_b32 v1, 2, v0")
    o("v_lshrrev_b32 v2, 6, v0")
    o("v_readfirstlane_b32 s26, v2")
    D0, S0, B0, R0 = 10, 23, 36, 49
    for i in range(13):
        o(f"s_add_u32 s33, s3, {i*1024}")
        o(f"buffer_load_dword v{D0+i}, v1, s[16:19], s33 offen")
    for i in range(13):
        o(f"s_add_u32 s33, s3, {i*1024}")
        o(f"buffer_load_dword v{S0+i}, v1, s[12:15], s33 offen")
    o("v_mov_b32 v3, 0")
    o(f"ds_write_b32 v1, v3 offset:{A_HIST}")
    o(f"v_cmp_gt_u32 s[24:25], {CH - 12*256}, v0")
    o("v_mov_b32 v4, 1")
    o("s_waitcnt lgkmcnt(0)")
    o("s_barrier")
    for i in range(13):
        o(f"s_waitcnt vmcnt({25-i})")
        o(f"v_mul_u32_u24 v{B0+i}, 0x29cc, v{D0+i}")
        o(f"v_lshrrev_b32 v{B0+i}, 20, v{B0+i}")
        o(f"v_lshlrev_b32 v{B0+i}, 2, v{B0+i}")
        if i == 12:
            o("s_mov_b64 exec, s[24:25]")
        o(f"ds_add_rtn_u32 v{R0+i}, v{B0+i}, v4 offset:{A_HIST}")
        if i == 12:
            o("s_mov_b64 exec, -1")
    o("s_waitcnt lgkmcnt(0)")
    o("s_barrier")
    o(f"ds_read_b32 v5, v1 offset:{A_HIST}")
    o("s_waitcnt lgkmcnt(0)")
    scan256(5, 6, 64, A_SC, 26, 27)
    o(f"ds_write_b32 v1, v6 offset:{A_OFFS}")
    o(f"v_lshlrev_b32 v7, 10, v0")
    o(f"s_lshl_b32 s27, s2, 2")
    o(f"s_add_u32 s27, s27, {WS_OFF}")
    o(f"buffer_store_dword v6, v7, s[20:23], s27 offen")
    o(f"v_mov_b32 v8, {CH}")
    o(f"v_mov_b32 v9, {256*1024}")
    o("v_cmp_eq_u32 vcc, 0, v0")
    o("s_and_saveexec_b64 s[28:29], vcc")
    o(f"buffer_store_dword v8, v9, s[20:23], s27 offen")
    o("s_mov_b64 exec, -1")
    o("s_waitcnt lgkmcnt(0)")
    o("s_barrier")
    o("s_waitcnt vmcnt(0)")
    for i in range(13):
        o(f"ds_read_b32 v{64+i}, v{B0+i} offset:{A_OFFS}")
    o(f"s_mul_i32 s30, s2, {CH}")
    for i in range(13):
        o(f"s_waitcnt lgkmcnt({12-i})")
        o(f"v_add_u32 v{64+i}, v{64+i}, v{R0+i}")
        o(f"v_lshlrev_b32 v{64+i}, 3, v{64+i}")
        o(f"v_mul_u32_u24 v2, {NB//2}, v{B0+i}")
        o(f"v_lshrrev_b32 v2, 1, v2")
        o(f"v_sub_u32 v2, v{D0+i}, v2")
        o(f"v_lshlrev_b32 v2, 24, v2")
        o(f"v_add_u32 v3, {i*256}, v0")
        o(f"v_add_u32 v3, s30, v3")
        o(f"v_or_b32 v{D0+i}, v2, v3")
        if i == 12:
            o("s_mov_b64 exec, s[24:25]")
        o(f"v_mov_b32 v2, v{D0+i}")
        o(f"v_mov_b32 v3, v{S0+i}")
        o(f"ds_write_b64 v{64+i}, v[2:3] offset:{A_STAGE}")
        if i == 12:
            o("s_mov_b64 exec, -1")
    o("s_waitcnt lgkmcnt(0)")
    o("s_barrier")
    o("v_lshlrev_b32 v1, 3, v0")
    for i in range(13):
        o(f"ds_read_b64 v[{64+2*i}:{65+2*i}], v1 offset:{A_STAGE + i*2048}")
    o(f"s_mul_i32 s31, s2, {CH*8}")
    for i in range(13):
        o(f"s_waitcnt lgkmcnt({12-i})")
        if i == 12:
            o("s_mov_b64 exec, s[24:25]")
        o(f"s_add_u32 s32, s31, {i*2048}")
        o(f"buffer_store_dwordx2 v[{64+2*i}:{65+2*i}], v1, s[20:23], s32 offen")
    o("s_endpgm")

    lab("A_frag")
    o(f"s_sub_u32 s3, s2, {NBK}")
    o("v_lshrrev_b32 v2, 6, v0")
    o("v_readfirstlane_b32 s26, v2")
    o("s_lshl_b32 s3, s3, 2")
    o("s_add_u32 s3, s3, s26")
    o("s_cmp_ge_u32 s3, 36")
    o("s_cbranch_scc1 A_end")
    o("s_load_dwordx2 s[34:35], s[0:1], 32")
    o("s_load_dwordx2 s[36:37], s[0:1], 40")
    o("s_load_dwordx2 s[38:39], s[0:1], 48")
    o("s_load_dwordx2 s[40:41], s[0:1], 56")
    o("s_load_dwordx2 s[42:43], s[0:1], 64")
    o("s_waitcnt lgkmcnt(0)")
    srd(20, 8, WS_SIZE)
    o("s_mov_b64 s[44:45], s[36:37]")
    o("s_mov_b32 s27, s3")
    o("s_cmp_ge_u32 s3, 8")
    o("s_cselect_b64 s[44:45], s[42:43], s[44:45]")
    o("s_cselect_b32 s28, 8, 0")
    o("s_sub_u32 s27, s3, s28")
    o("s_cmp_ge_u32 s3, 16")
    o("s_cselect_b64 s[44:45], s[38:39], s[44:45]")
    o("s_cselect_b32 s28, 16, s28")
    o("s_sub_u32 s27, s3, s28")
    o("s_cmp_ge_u32 s3, 20")
    o("s_cselect_b64 s[44:45], s[34:35], s[44:45]")
    o("s_cselect_b32 s28, 20, s28")
    o("s_sub_u32 s27, s3, s28")
    o("s_cmp_ge_u32 s3, 28")
    o("s_cselect_b64 s[44:45], s[40:41], s[44:45]")
    o("s_cselect_b32 s28, 28, s28")
    o("s_sub_u32 s27, s3, s28")
    srd(12, 44, 64 * 64 * 2)
    o("v_and_b32 v1, 63, v0")
    o("v_and_b32 v2, 15, v1")
    o("v_lshrrev_b32 v3, 4, v1")
    o("s_lshl_b32 s29, s3, 10")
    o(f"s_add_u32 s29, s29, {WS_FRAG}")
    o("v_lshlrev_b32 v4, 4, v1")
    o("s_cmp_eq_u32 s28, 16")
    o("s_cbranch_scc1 A_fragc")
    o("s_lshr_b32 s30, s27, 1")
    o("s_and_b32 s31, s27, 1")
    o("s_lshl_b32 s30, s30, 5")
    o("s_lshl_b32 s31, s31, 12")
    o("s_add_u32 s30, s30, s31")
    o("v_lshlrev_b32 v5, 10, v3")
    o("v_lshl_add_u32 v5, v2, 1, v5")
    for j in range(8):
        o(f"buffer_load_ushort v{8+j}, v5, s[12:15], s30 offen offset:{j*128}")
    o("s_waitcnt vmcnt(0)")
    for j in range(4):
        o(f"v_lshl_or_b32 v{16+j}, v{9+2*j}, 16, v{8+2*j}")
    o("buffer_store_dwordx4 v[16:19], v4, s[20:23], s29 offen")
    o("s_endpgm")
    lab("A_fragc")
    o("s_lshl_b32 s30, s27, 5")
    o("v_lshlrev_b32 v5, 9, v3")
    o("v_lshl_add_u32 v5, v2, 1, v5")
    for j in range(4):
        o(f"buffer_load_ushort v{8+j}, v5, s[12:15], s30 offen offset:{j*128}")
    o("s_waitcnt vmcnt(0)")
    for j in range(2):
        o(f"v_lshl_or_b32 v{16+j}, v{9+2*j}, 16, v{8+2*j}")
    o("v_lshlrev_b32 v4, 3, v1")
    o("buffer_store_dwordx2 v[16:17], v4, s[20:23], s29 offen")
    lab("A_end")
    o("s_endpgm")

CAP = 4096
C_REC = 0
C_ACC = C_REC + CAP * 8
C_XA = C_ACC + 112 * 512
C_XU = C_XA + 112 * 256
C_CNT = C_XU + 112 * 256
C_NOFF = C_CNT + 512
C_SC = C_NOFF + 512
C_TL = C_SC + 256
TLN = 384
C_LDS = C_TL + 8 * TLN * 4
WF = 64
SLOT = [136, 148, 160]
DG, DH, DEN, NUM, CXA = 172, 188, 204, 220, 236

def frag_load(first, cnt, dst):
    for k in range(cnt):
        o(f"s_add_u32 s40, s39, {(first+k)*1024}")
        o(f"buffer_load_dwordx4 v[{dst+4*k}:{dst+4*k+3}], v4, s[16:19], s40 offen")

def gen_main():
    lab(MAIN)
    o("s_load_dwordx2 s[4:5], s[0:1], 0")
    o("s_load_dwordx2 s[6:7], s[0:1], 8")
    o("s_load_dwordx2 s[8:9], s[0:1], 88")
    o("s_load_dwordx2 s[10:11], s[0:1], 72")
    o(f"s_cmp_ge_u32 s2, {NBK}")
    o("s_cbranch_scc1 C_end")
    o("s_waitcnt lgkmcnt(0)")
    stamp()
    srd(12, 4, N * 128)
    srd(24, 6, E * 32)
    srd(16, 8, WS_SIZE)
    srd(20, 10, N * 128)
    o(f"s_mul_i32 s3, s2, {NB}")
    o("v_and_b32 v3, 63, v0")
    o("v_and_b32 v1, 15, v0")
    o("v_bfe_u32 v2, v0, 4, 2")
    o("v_lshrrev_b32 v5, 6, v0")
    o("v_readfirstlane_b32 s38, v5")
    o("v_lshlrev_b32 v4, 4, v3")
    o(f"s_mov_b32 s39, {WS_FRAG}")
    o("s_cmp_ge_u32 s38, 7")
    o("s_cbranch_scc1 C_p0b")
    frag_load(20, 16, WF)
    o("s_lshl_b32 s41, s38, 4")
    o("s_add_u32 s41, s41, s3")
    o("v_add_u32 v6, s41, v1")
    o("v_lshlrev_b32 v6, 7, v6")
    o("v_lshl_add_u32 v6, v2, 4, v6")
    o("buffer_load_dwordx4 v[8:11], v6, s[12:15], 0 offen")
    o("buffer_load_dwordx4 v[12:15], v6, s[12:15], 0 offen offset:64")
    o("s_waitcnt vmcnt(0)")
    for nt in range(8):
        o(f"v_mfma_f32_16x16x32_bf16 v[{16+4*nt}:{19+4*nt}], v[8:11], v[{WF+8*nt}:{WF+8*nt+3}], 0")
    for nt in range(8):
        o(f"v_mfma_f32_16x16x32_bf16 v[{16+4*nt}:{19+4*nt}], v[12:15], v[{WF+8*nt+4}:{WF+8*nt+7}], v[{16+4*nt}:{19+4*nt}]")
    o("s_nop 7")
    o("s_nop 7")
    o("v_lshlrev_b32 v6, 10, v2")
    o("v_lshl_add_u32 v6, v1, 2, v6")
    o("s_lshl_b32 s41, s38, 12")
    o("v_add_u32 v6, s41, v6")
    for nt in range(8):
        base = C_XA if nt < 4 else C_XU
        for r in range(0, 4, 2):
            a = 16 + 4 * nt + r
            o(f"v_cvt_pk_bf16_f32 v7, v{a}, v{a+1}")
            o(f"v_lshlrev_b32 v{a}, 16, v7")
            o(f"v_and_b32 v{a+1}, 0xffff0000, v7")
            o(f"ds_write_b32 v6, v{a} offset:{base + (nt%4)*64 + r*256}")
            o(f"ds_write_b32 v6, v{a+1} offset:{base + (nt%4)*64 + (r+1)*256}")
    lab("C_p0b")
    frag_load(0, 16, WF)
    o("v_lshlrev_b32 v5, 3, v3")
    for k in range(4):
        o(f"s_add_u32 s40, s39, {(16+k)*1024}")
        o(f"buffer_load_dwordx2 v[{WF+64+2*k}:{WF+64+2*k+1}], v5, s[16:19], s40 offen")
    o("v_mov_b32 v8, 0")
    o("v_mov_b32 v9, 0")
    o("v_mov_b32 v10, 0")
    o("v_mov_b32 v11, 0")
    o("v_lshlrev_b32 v6, 4, v0")
    for k in range(7):
        o(f"ds_write_b128 v6, v[8:11] offset:{C_ACC + k*8192}")
    o("v_lshlrev_b32 v6, 2, v0")
    o("s_lshl_b32 s41, s2, 10")
    o(f"s_add_u32 s41, s41, {WS_OFF}")
    o("s_cmp_ge_u32 s38, 4")
    o("s_cbranch_scc1 C_p0c")
    o("buffer_load_dword v20, v6, s[16:19], s41 offen")
    o("buffer_load_dword v21, v6, s[16:19], s41 offen offset:1024")
    o("s_waitcnt vmcnt(0)")
    o("v_sub_u32 v21, v21, v20")
    lab("C_p0c")
    o("s_cmp_ge_u32 s38, 4")
    o("s_cbranch_scc0 C_p0d")
    o("v_mov_b32 v20, 0")
    o("v_mov_b32 v21, 0")
    lab("C_p0d")
    scan256(21, 22, 24, C_SC, 38, 42)
    o("v_mov_b32 v24, 0")
    o(f"ds_read_b128 v[24:27], v24 offset:{C_SC}")
    o("s_waitcnt lgkmcnt(0)")
    o("v_add_u32 v24, v24, v25")
    o("v_add_u32 v26, v26, v27")
    o("v_add_u32 v24, v24, v26")
    o("v_readfirstlane_b32 s47, v24")
    o(f"v_mul_u32_u24 v23, {CH*8}, v0")
    o("v_lshl_add_u32 v23, v20, 3, v23")
    o("s_mov_b32 s48, 0")
    stamp()
    lab("C_round")
    o("s_cmp_ge_u32 s38, 4")
    o("s_cbranch_scc1 C_cp_done")
    o("v_mov_b32 v28, 0")
    lab("C_cp_loop")
    o("v_cmp_lt_u32 vcc, v28, v21")
    o("s_cbranch_vccz C_cp_done")
    for u in range(4):
        o(f"v_add_u32 v{30+u}, {u}, v28")
        o(f"v_cmp_lt_u32 s[{50+2*u}:{51+2*u}], v{30+u}, v21")
        o(f"v_add_u32 v{30+u}, v{30+u}, v22")
        o(f"v_subrev_u32 v{30+u}, s48, v{30+u}")
        o(f"v_cmp_gt_u32 vcc, {CAP}, v{30+u}")
        o(f"s_and_b64 s[{50+2*u}:{51+2*u}], s[{50+2*u}:{51+2*u}], vcc")
        o(f"v_lshlrev_b32 v{30+u}, 3, v{30+u}")
        o(f"v_lshl_add_u32 v29, v28, 3, v23")
        o(f"s_mov_b64 exec, s[{50+2*u}:{51+2*u}]")
        o(f"buffer_load_dwordx2 v[{36+2*u}:{37+2*u}], v29, s[16:19], 0 offen offset:{8*u}")
        o("s_mov_b64 exec, -1")
    for u in range(4):
        o(f"s_waitcnt vmcnt({3-u})")
        o(f"s_mov_b64 exec, s[{50+2*u}:{51+2*u}]")
        o(f"ds_write_b64 v{30+u}, v[{36+2*u}:{37+2*u}] offset:{C_REC}")
        o("s_mov_b64 exec, -1")
    o("v_add_u32 v28, 4, v28")
    o("s_branch C_cp_loop")
    lab("C_cp_done")
    stamp()
    o("v_lshlrev_b32 v6, 2, v0")
    o("v_mov_b32 v7, 0")
    o("v_cmp_gt_u32 vcc, 128, v0")
    o("s_and_saveexec_b64 s[50:51], vcc")
    o(f"ds_write_b32 v6, v7 offset:{C_CNT}")
    o("s_mov_b64 exec, -1")
    o("s_waitcnt vmcnt(0) lgkmcnt(0)")
    o("s_barrier")
    o("s_sub_u32 s49, s47, s48")
    o(f"s_min_u32 s49, s49, {CAP}")
    o("v_lshlrev_b32 v6, 3, v0")
    o("v_mov_b32 v7, 1")
    for k in range(8):
        o(f"v_add_u32 v5, {512*k}, v0")
        o(f"v_cmp_gt_u32 s[{50+2*k}:{51+2*k}], s49, v5")
        o(f"s_mov_b64 exec, s[{50+2*k}:{51+2*k}]")
        o(f"ds_read_b64 v[{28+2*k}:{29+2*k}], v6 offset:{C_REC + 4096*k}")
        o("s_mov_b64 exec, -1")
    o("s_waitcnt lgkmcnt(0)")
    for k in range(8):
        o(f"v_lshrrev_b32 v5, 24, v{28+2*k}")
        o("v_lshlrev_b32 v5, 2, v5")
        o(f"s_mov_b64 exec, s[{50+2*k}:{51+2*k}]")
        o(f"ds_add_rtn_u32 v{44+k}, v5, v7 offset:{C_CNT}")
        o("s_mov_b64 exec, -1")
    o("s_waitcnt lgkmcnt(0)")
    o("s_barrier")
    o("s_cmp_lg_u32 s38, 0")
    o("s_cbranch_scc1 C_scan_done")
    o("v_lshlrev_b32 v6, 3, v0")
    o(f"ds_read_b64 v[8:9], v6 offset:{C_CNT}")
    o("s_waitcnt lgkmcnt(0)")
    o("v_add_u32 v10, v8, v9")
    o("v_mov_b32 v12, v10")
    wave_scan(12)
    o("v_sub_u32 v12, v12, v10")
    o("v_add_u32 v13, v12, v8")
    o(f"ds_write_b64 v6, v[12:13] offset:{C_NOFF}")
    o("s_waitcnt lgkmcnt(0)")
    lab("C_scan_done")
    o("s_barrier")
    for k in range(8):
        o(f"v_lshrrev_b32 v5, 24, v{28+2*k}")
        o("v_lshlrev_b32 v5, 2, v5")
        o(f"s_mov_b64 exec, s[{50+2*k}:{51+2*k}]")
        o(f"ds_read_b32 v{52+k}, v5 offset:{C_NOFF}")
        o("s_mov_b64 exec, -1")
    o("s_waitcnt lgkmcnt(0)")
    for k in range(8):
        o(f"v_add_u32 v5, v{52+k}, v{44+k}")
        o("v_lshlrev_b32 v5, 3, v5")
        o(f"s_mov_b64 exec, s[{50+2*k}:{51+2*k}]")
        o(f"ds_write_b64 v5, v[{28+2*k}:{29+2*k}] offset:{C_REC}")
        o("s_mov_b64 exec, -1")
    o("s_waitcnt lgkmcnt(0)")
    o("s_barrier")
    stamp()
    o("v_lshlrev_b32 v5, 3, v3")
    o("v_add_u32 v5, s38, v5")
    o(f"v_cmp_gt_u32 vcc, {NB}, v5")
    o("v_lshlrev_b32 v6, 2, v5")
    o("v_min_u32 v6, 508, v6")
    o(f"ds_read_b32 v8, v6 offset:{C_NOFF}")
    o(f"ds_read_b32 v9, v6 offset:{C_CNT}")
    o("s_waitcnt lgkmcnt(0)")
    o("v_cndmask_b32 v9, 0, v9, vcc")
    o("v_add_u32 v10, 15, v9")
    o("v_lshrrev_b32 v10, 4, v10")
    o("v_mov_b32 v11, v10")
    wave_scan(11)
    o("v_readlane_b32 s44, v11, 63")
    o("v_sub_u32 v11, v11, v10")
    o(f"s_mul_i32 s45, s38, {TLN*4}")
    o(f"s_add_u32 s45, s45, {C_TL}")
    o("v_lshlrev_b32 v11, 2, v11")
    o("v_add_u32 v11, s45, v11")
    o("v_mov_b32 v12, 0")
    o("v_lshlrev_b32 v13, 17, v5")
    lab("C_tl_loop")
    o("v_cmp_lt_u32 vcc, v12, v10")
    o("s_cbranch_vccz C_tl_done")
    o("s_and_saveexec_b64 s[50:51], vcc")
    o("v_lshlrev_b32 v14, 4, v12")
    o("v_sub_u32 v15, v9, v14")
    o("v_min_u32 v15, 16, v15")
    o("v_add_u32 v14, v14, v8")
    o("v_lshl_or_b32 v14, v15, 12, v14")
    o("v_or_b32 v14, v14, v13")
    o("v_cmp_eq_u32 vcc, 0, v12")
    o("v_cndmask_b32 v15, 0, 1, vcc")
    o("v_lshl_or_b32 v14, v15, 24, v14")
    o("v_add_u32 v15, 1, v12")
    o("v_cmp_eq_u32 vcc, v15, v10")
    o("v_cndmask_b32 v15, 0, 1, vcc")
    o("v_lshl_or_b32 v14, v15, 25, v14")
    o("ds_write_b32 v11, v14")
    o("v_add_u32 v11, 4, v11")
    o("v_add_u32 v12, 1, v12")
    o("s_mov_b64 exec, -1")
    o("s_branch C_tl_loop")
    lab("C_tl_done")
    o("s_waitcnt lgkmcnt(0)")
    stamp()
    for r in range(4):
        o(f"v_lshl_add_u32 v{16+r}, v2, 2, {r}")
    o(f"v_lshlrev_b32 v20, 2, v1")
    o(f"v_add_u32 v20, {C_XA}, v20")
    o(f"v_lshlrev_b32 v21, 2, v1")
    o(f"v_add_u32 v21, {C_ACC}, v21")
    o("v_lshlrev_b32 v22, 4, v2")
    o("v_lshlrev_b32 v23, 3, v2")
    o("v_mov_b32 v24, s45")
    for k in range(16):
        o(f"v_mov_b32 v{DEN+k}, 0")
        o(f"v_mov_b32 v{NUM+k}, 0")
    o("s_cmp_eq_u32 s44, 0")
    o("s_cbranch_scc1 C_loop_end")
    o("ds_read_b32 v25, v24")
    o("v_add_u32 v24, 4, v24")
    o("s_mov_b32 s46, 0")
    o("s_mov_b32 s88, 0")

    def prefetch(slot):
        b = SLOT[slot]
        o("s_waitcnt lgkmcnt(0)")
        o("v_readfirstlane_b32 s62, v25")
        o("ds_read_b32 v25, v24")
        o("v_add_u32 v24, 4, v24")
        o("s_bfe_u32 s63, s62, 0x5000c")
        o("s_and_b32 s64, s62, 0xfff")
        o("s_sub_u32 s63, s63, 1")
        o("v_min_u32 v26, s63, v1")
        o("v_add_u32 v26, s64, v26")
        o("v_lshlrev_b32 v26, 3, v26")
        o(f"ds_read_b64 v[26:27], v26 offset:{C_REC}")
        o("s_waitcnt lgkmcnt(0)")
        o("v_lshl_add_u32 v27, v27, 7, v22")
        o("v_and_b32 v26, 0xfffff, v26")
        o("v_lshl_add_u32 v26, v26, 5, v23")
        if DBG == 2:
            o("v_mov_b32 v26, v23")
        o(f"buffer_load_dwordx4 v[{b}:{b+3}], v27, s[12:15], 0 offen")
        o(f"buffer_load_dwordx4 v[{b+4}:{b+7}], v27, s[12:15], 0 offen offset:64")
        o(f"buffer_load_dwordx2 v[{b+8}:{b+9}], v26, s[24:27], 0 offen")

    cnt_lbl = [0]
    def compute(slot):
        b = SLOT[slot]
        u = cnt_lbl[0]; cnt_lbl[0] += 1
        o("s_bitcmp1_b32 s60, 24")
        o(f"s_cbranch_scc0 C_nf{u}")
        o("s_bfe_u32 s65, s60, 0x70011")
        o("s_lshl_b32 s65, s65, 8")
        o("v_add_u32 v28, s65, v20")
        for nt in range(4):
            for r in range(4):
                o(f"ds_read_b32 v{CXA+4*nt+r}, v28 offset:{64*nt}")
        o("s_waitcnt lgkmcnt(0)")
        lab(f"C_nf{u}")
        o("s_bfe_u32 s66, s60, 0x5000c")
        for r in range(4):
            o(f"v_cmp_gt_u32 s[{50+2*r}:{51+2*r}], s66, v{16+r}")
        o("s_waitcnt vmcnt(6)")
        if DBG:
            o("s_memtime s[84:85]")
            o("s_waitcnt lgkmcnt(0)")
        for nt in range(4):
            o(f"v_mfma_f32_16x16x16_bf16 v[{DG+4*nt}:{DG+4*nt+3}], v[{b+8}:{b+9}], v[{WF+64+2*nt}:{WF+64+2*nt+1}], v[{CXA+4*nt}:{CXA+4*nt+3}]")
        for nt in range(4):
            o(f"v_mfma_f32_16x16x32_bf16 v[{DH+4*nt}:{DH+4*nt+3}], v[{b}:{b+3}], v[{WF+32+8*nt}:{WF+32+8*nt+3}], 0")
        for nt in range(4):
            o(f"v_mfma_f32_16x16x32_bf16 v[{DG+4*nt}:{DG+4*nt+3}], v[{b}:{b+3}], v[{WF+8*nt}:{WF+8*nt+3}], v[{DG+4*nt}:{DG+4*nt+3}]")
        for nt in range(4):
            o(f"v_mfma_f32_16x16x32_bf16 v[{DH+4*nt}:{DH+4*nt+3}], v[{b+4}:{b+7}], v[{WF+32+8*nt+4}:{WF+32+8*nt+7}], v[{DH+4*nt}:{DH+4*nt+3}]")
        for nt in range(4):
            o(f"v_mfma_f32_16x16x32_bf16 v[{DG+4*nt}:{DG+4*nt+3}], v[{b+4}:{b+7}], v[{WF+8*nt+4}:{WF+8*nt+7}], v[{DG+4*nt}:{DG+4*nt+3}]")
        o("s_nop 7")
        for k in range(16):
            o(f"v_mul_f32 v{DG+k}, 0xbfb8aa3b, v{DG+k}")
        for k in range(16):
            o(f"v_exp_f32 v{DG+k}, v{DG+k}")
        for k in range(16):
            o(f"v_add_f32 v{DG+k}, 1.0, v{DG+k}")
        for k in range(16):
            o(f"v_rcp_f32 v{DG+k}, v{DG+k}")
        o("s_nop 0")
        if DBG:
            o("v_mov_b32 v62, v{DG}".format(DG=DG))
            o("s_memtime s[86:87]")
            o("s_waitcnt lgkmcnt(0)")
            o("s_sub_u32 s86, s86, s84")
            o("s_add_u32 s88, s88, s86")
        for r in range(4):
            o(f"s_mov_b64 exec, s[{50+2*r}:{51+2*r}]")
            for nt in range(4):
                k = 4 * nt + r
                o(f"v_add_f32 v{DEN+k}, v{DEN+k}, v{DG+k}")
                o(f"v_fmac_f32 v{NUM+k}, v{DG+k}, v{DH+k}")
        o("s_mov_b64 exec, -1")
        o("s_bitcmp1_b32 s60, 25")
        o(f"s_cbranch_scc0 C_nl{u}")
        o("s_bfe_u32 s65, s60, 0x70011")
        o("s_lshl_b32 s65, s65, 9")
        o("v_add_u32 v28, s65, v21")
        vals = [base + 4 * nt for base in (DEN, NUM) for nt in range(4)]
        offs = [64 * nt + (256 if base == NUM else 0) for base in (DEN, NUM) for nt in range(4)]
        for i, a in enumerate(vals):
            o(f"ds_read_b32 v{30+i}, v28 offset:{offs[i]}")
        for a in vals:
            o(f"v_add_f32 v{a}, v{a}, v{a+1}")
            o(f"v_add_f32 v{a+2}, v{a+2}, v{a+3}")
        for a in vals:
            o(f"v_add_f32 v{a}, v{a}, v{a+2}")
        for a in vals:
            o(f"v_mov_b32 v{a+1}, v{a}")
        o("s_nop 1")
        for a in vals:
            o(f"v_permlane32_swap_b32 v{a}, v{a+1}")
        for a in vals:
            o(f"v_add_f32 v{a}, v{a}, v{a+1}")
        for a in vals:
            o(f"v_mov_b32 v{a+1}, v{a}")
        o("s_nop 1")
        for a in vals:
            o(f"v_permlane16_swap_b32 v{a}, v{a+1}")
        o("s_waitcnt lgkmcnt(0)")
        for i, a in enumerate(vals):
            o(f"v_add_f32 v{a}, v{a}, v{a+1}")
            o(f"v_add_f32 v{a}, v{a}, v{30+i}")
        for i, a in enumerate(vals):
            o(f"ds_write_b32 v28, v{a} offset:{offs[i]}")
        for k in range(16):
            o(f"v_mov_b32 v{DEN+k}, 0")
            o(f"v_mov_b32 v{NUM+k}, 0")
        lab(f"C_nl{u}")

    prefetch(0)
    o("s_mov_b32 s60, s62")
    prefetch(1)
    o("s_mov_b32 s61, s62")
    lab("C_loop")
    for u in range(3):
        prefetch((u + 2) % 3)
        compute(u)
        o("s_mov_b32 s60, s61")
        o("s_mov_b32 s61, s62")
        o("s_add_u32 s46, s46, 1")
        o("s_cmp_ge_u32 s46, s44")
        o("s_cbranch_scc1 C_loop_end")
    o("s_branch C_loop")
    lab("C_loop_end")
    o("s_waitcnt vmcnt(0) lgkmcnt(0)")
    stamp()
    o("s_barrier")
    o(f"s_add_u32 s48, s48, {CAP}")
    o("s_cmp_lt_u32 s48, s47")
    o("s_cbranch_scc1 C_round")
    o("v_mov_b32 v40, 0x358637bd")
    for k in range(7):
        o(f"v_add_u32 v5, {512*k}, v0")
        o("v_lshrrev_b32 v6, 5, v5")
        o("v_and_b32 v7, 31, v5")
        o("v_add_u32 v8, s3, v6")
        o(f"v_cmp_gt_u32 vcc, {NB}, v6")
        o(f"s_mov_b32 s54, {N}")
        o("v_cmp_gt_u32 s[50:51], s54, v8")
        o("s_and_b64 vcc, vcc, s[50:51]")
        o("s_and_saveexec_b64 s[52:53], vcc")
        o("v_lshlrev_b32 v9, 9, v6")
        o("v_lshl_add_u32 v9, v7, 3, v9")
        o(f"ds_read_b64 v[10:11], v9 offset:{C_ACC}")
        o(f"ds_read_b64 v[12:13], v9 offset:{C_ACC+256}")
        o("v_lshlrev_b32 v9, 8, v6")
        o("v_lshl_add_u32 v9, v7, 3, v9")
        o(f"ds_read_b64 v[14:15], v9 offset:{C_XU}")
        o("v_lshlrev_b32 v9, 7, v8")
        o("v_lshl_add_u32 v9, v7, 2, v9")
        o("buffer_load_dword v16, v9, s[12:15], 0 offen")
        o("s_waitcnt vmcnt(0) lgkmcnt(0)")
        for h in range(2):
            o(f"v_add_f32 v{10+h}, v40, v{10+h}")
            o(f"v_rcp_f32 v{10+h}, v{10+h}")
            o("s_nop 0")
            o(f"v_fma_f32 v{14+h}, v{12+h}, v{10+h}, v{14+h}")
        o("v_cvt_pk_bf16_f32 v14, v14, v15")
        o("v_lshlrev_b32 v10, 16, v14")
        o("v_and_b32 v11, 0xffff0000, v14")
        o("v_max_f32 v10, 0, v10")
        o("v_max_f32 v11, 0, v11")
        o("v_lshlrev_b32 v12, 16, v16")
        o("v_and_b32 v13, 0xffff0000, v16")
        o("v_add_f32 v10, v10, v12")
        o("v_add_f32 v11, v11, v13")
        o("v_cvt_pk_bf16_f32 v10, v10, v11")
        o("buffer_store_dword v10, v9, s[20:23], 0 offen")
        o("s_mov_b64 exec, -1")
    if DBG:
        stamp()
        o("s_load_dwordx2 s[4:5], s[0:1], 80")
        o("s_waitcnt lgkmcnt(0)")
        srd(28, 4, 256)
        o("s_cmp_lg_u32 s2, 7")
        o("s_cbranch_scc1 C_end")
        o("v_lshlrev_b32 v5, 2, v0")
        o("s_add_u32 s86, s88, s70")
        o("s_add_u32 s84, s44, s70")
        for k in range(1, 9):
            o(f"s_sub_u32 s54, s{70+2*k}, s70")
            o("v_mov_b32 v6, s54")
            o(f"v_cmp_eq_u32 vcc, {k}, v0")
            o("s_and_saveexec_b64 s[52:53], vcc")
            o("buffer_store_dword v6, v5, s[28:31], 0 offen")
            o("s_mov_b64 exec, -1")
    lab("C_end")
    o("s_endpgm")

def kd(name, vg, sg):
    return f""".amdhsa_kernel {name}
  .amdhsa_next_free_vgpr {vg}
  .amdhsa_next_free_sgpr {sg}
  .amdhsa_accum_offset {vg}
  .amdhsa_group_segment_fixed_size 0
  .amdhsa_kernarg_size 96
  .amdhsa_user_sgpr_count 2
  .amdhsa_user_sgpr_kernarg_segment_ptr 1
  .amdhsa_system_sgpr_workgroup_id_x 1
.end_amdhsa_kernel
"""

def main():
    hdr = open("standalone__edge_featured_mpnn_gatedgcn__graph.s.ref").read().split("\n")
    head = [l for l in hdr if l.startswith(";") and "@launch" not in l and "Override" not in l and "grid=ceil" not in l]
    out = head[:]
    out.append(f"; @launch kernel={PART} grid=({NBK+9},1,1) block=(256,1,1) lds=27392")
    out.append(f"; @launch kernel={MAIN} grid=({NBK},1,1) block=(512,1,1) lds={C_LDS}")
    out.append('.amdgcn_target "amdgcn-amd-amdhsa--gfx950"')
    out.append(".text")
    global L
    for name, fn in ((PART, gen_part), (MAIN, gen_main)):
        L = []
        out.append(f".globl {name}")
        out.append(".p2align 8")
        out.append(f".type {name},@function")
        fn()
        out += L
    out.append('.section .rodata,"a"')
    out.append(".p2align 6")
    out.append(kd(PART, 96, 64))
    out.append(".p2align 6")
    out.append(kd(MAIN, 256, 100))
    open("standalone__edge_featured_mpnn_gatedgcn__graph.s", "w").write("\n".join(out) + "\n")
    print("LDS C:", C_LDS)

main()
```

```python
import sys, re, os
DBG = int(os.environ.get("DBG", "0"))
stamp_n = [0]
def stamp():
    if DBG:
        k = stamp_n[0]; stamp_n[0] += 1
        o("s_waitcnt lgkmcnt(0)")
        o(f"s_memtime s[{70+2*k}:{71+2*k}]")
        o("s_waitcnt lgkmcnt(0)")


N = 25000; E = 800000; NB = 98; NBK = 256; CH = 3125
MAIN = "standalone__edge_featured_mpnn_gatedgcn__graph_kernel"
PART = "gcn_part_kernel"

WS_REC = 0
WS_OFF = E * 8
WS_FRAG = WS_OFF + 257 * 256 * 4
WS_SIZE = 0x10000000

L = []
def o(s):
    m = re.match(r"(ds_\w+) (.*) offset:(\d+)$", s)
    if m and int(m.group(3)) > 65535:
        op, args, off = m.group(1), m.group(2), int(m.group(3))
        parts = [p.strip() for p in args.split(",")]
        ai = 1 if op.startswith("ds_read") or op.endswith("rtn_u32") else 0
        hi = off & ~0xfff
        L.append(f"    v_add_u32 v63, {hi}, {parts[ai]}")
        parts[ai] = "v63"
        L.append(f"    {op} {', '.join(parts)} offset:{off - hi}")
        return
    if s.startswith("v_readfirstlane") or s.startswith("v_readlane"):
        L.append("    s_nop 0")
    if s.startswith("v_cndmask"):
        L.append("    s_nop 1")
    L.append("    " + s)
def lab(s): L.append(s + ":")

def srd(d, b, size):
    o(f"s_mov_b32 s{d}, s{b}")
    o(f"s_mov_b32 s{d+1}, s{b+1}")
    o(f"s_mov_b32 s{d+2}, {size}")
    o(f"s_mov_b32 s{d+3}, 0x00020000")

def wave_scan(vi):
    o("s_nop 1")
    for sh in (1, 2, 4, 8):
        o(f"v_add_u32_dpp v{vi}, v{vi}, v{vi} row_shr:{sh} row_mask:0xf bank_mask:0xf bound_ctrl:0")
        o("s_nop 1")
    o(f"v_add_u32_dpp v{vi}, v{vi}, v{vi} row_bcast:15 row_mask:0xa bank_mask:0xf")
    o("s_nop 1")
    o(f"v_add_u32_dpp v{vi}, v{vi}, v{vi} row_bcast:31 row_mask:0xc bank_mask:0xf")
    o("s_nop 1")

def scan256(vin, vex, vt, lds_sc, swave, st, nbar_waves_extra=False):
    o(f"v_mov_b32 v{vex}, v{vin}")
    wave_scan(vex)
    o(f"v_readlane_b32 s{st}, v{vex}, 63")
    o(f"v_mov_b32 v{vt}, s{swave}")
    o(f"v_lshlrev_b32 v{vt}, 2, v{vt}")
    o(f"v_mov_b32 v{vt+1}, s{st}")
    o(f"ds_write_b32 v{vt}, v{vt+1} offset:{lds_sc}")
    o("s_waitcnt lgkmcnt(0)")
    o("s_barrier")
    o(f"v_mov_b32 v{vt}, 0")
    o(f"ds_read_b128 v[{vt}:{vt+3}], v{vt} offset:{lds_sc}")
    o("s_waitcnt lgkmcnt(0)")
    for k in range(3):
        o(f"v_readfirstlane_b32 s{st+1+k}, v{vt+k}")
    o(f"s_mov_b32 s{st}, 0")
    for k in range(3):
        o(f"s_cmp_gt_u32 s{swave}, {k}")
        o(f"s_cselect_b32 s{st+4}, s{st+1+k}, 0")
        o(f"s_add_u32 s{st}, s{st}, s{st+4}")
    o(f"v_sub_u32 v{vex}, v{vex}, v{vin}")
    o(f"v_add_u32 v{vex}, s{st}, v{vex}")

def gen_part():
    A_HIST = 0; A_OFFS = 1024; A_SC = 2048; A_STAGE = 2304
    lab(PART)
    o("s_load_dwordx2 s[4:5], s[0:1], 16")
    o("s_load_dwordx2 s[6:7], s[0:1], 24")
    o("s_load_dwordx2 s[8:9], s[0:1], 88")
    o(f"s_cmp_ge_u32 s2, {NBK}")
    o("s_cbranch_scc1 A_frag")
    o("s_waitcnt lgkmcnt(0)")
    srd(12, 4, E * 4)
    srd(16, 6, E * 4)
    srd(20, 8, WS_SIZE)
    o(f"s_mul_i32 s3, s2, {CH*4}")
    o("v_lshlrev_b32 v1, 2, v0")
    o("v_lshrrev_b32 v2, 6, v0")
    o("v_readfirstlane_b32 s26, v2")
    D0, S0, B0, R0 = 10, 23, 36, 49
    for i in range(13):
        o(f"s_add_u32 s33, s3, {i*1024}")
        o(f"buffer_load_dword v{D0+i}, v1, s[16:19], s33 offen")
    for i in range(13):
        o(f"s_add_u32 s33, s3, {i*1024}")
        o(f"buffer_load_dword v{S0+i}, v1, s[12:15], s33 offen")
    o("v_mov_b32 v3, 0")
    o(f"ds_write_b32 v1, v3 offset:{A_HIST}")
    o(f"v_cmp_gt_u32 s[24:25], {CH - 12*256}, v0")
    o("v_mov_b32 v4, 1")
    o("s_waitcnt lgkmcnt(0)")
    o("s_barrier")
    for i in range(13):
        o(f"s_waitcnt vmcnt({25-i})")
        o(f"v_mul_u32_u24 v{B0+i}, 0x29cc, v{D0+i}")
        o(f"v_lshrrev_b32 v{B0+i}, 20, v{B0+i}")
        o(f"v_lshlrev_b32 v{B0+i}, 2, v{B0+i}")
        if i == 12:
            o("s_mov_b64 exec, s[24:25]")
        o(f"ds_add_rtn_u32 v{R0+i}, v{B0+i}, v4 offset:{A_HIST}")
        if i == 12:
            o("s_mov_b64 exec, -1")
    o("s_waitcnt lgkmcnt(0)")
    o("s_barrier")
    o(f"ds_read_b32 v5, v1 offset:{A_HIST}")
    o("s_waitcnt lgkmcnt(0)")
    scan256(5, 6, 64, A_SC, 26, 27)
    o(f"ds_write_b32 v1, v6 offset:{A_OFFS}")
    o(f"v_lshlrev_b32 v7, 10, v0")
    o(f"s_lshl_b32 s27, s2, 2")
    o(f"s_add_u32 s27, s27, {WS_OFF}")
    o(f"buffer_store_dword v6, v7, s[20:23], s27 offen")
    o(f"v_mov_b32 v8, {CH}")
    o(f"v_mov_b32 v9, {256*1024}")
    o("v_cmp_eq_u32 vcc, 0, v0")
    o("s_and_saveexec_b64 s[28:29], vcc")
    o(f"buffer_store_dword v8, v9, s[20:23], s27 offen")
    o("s_mov_b64 exec, -1")
    o("s_waitcnt lgkmcnt(0)")
    o("s_barrier")
    o("s_waitcnt vmcnt(0)")
    for i in range(13):
        o(f"ds_read_b32 v{64+i}, v{B0+i} offset:{A_OFFS}")
    o(f"s_mul_i32 s30, s2, {CH}")
    for i in range(13):
        o(f"s_waitcnt lgkmcnt({12-i})")
        o(f"v_add_u32 v{64+i}, v{64+i}, v{R0+i}")
        o(f"v_lshlrev_b32 v{64+i}, 3, v{64+i}")
        o(f"v_mul_u32_u24 v2, {NB//2}, v{B0+i}")
        o(f"v_lshrrev_b32 v2, 1, v2")
        o(f"v_sub_u32 v2, v{D0+i}, v2")
        o(f"v_lshlrev_b32 v2, 24, v2")
        o(f"v_add_u32 v3, {i*256}, v0")
        o(f"v_add_u32 v3, s30, v3")
        o(f"v_or_b32 v{D0+i}, v2, v3")
        if i == 12:
            o("s_mov_b64 exec, s[24:25]")
        o(f"v_mov_b32 v2, v{D0+i}")
        o(f"v_mov_b32 v3, v{S0+i}")
        o(f"ds_write_b64 v{64+i}, v[2:3] offset:{A_STAGE}")
        if i == 12:
            o("s_mov_b64 exec, -1")
    o("s_waitcnt lgkmcnt(0)")
    o("s_barrier")
    o("v_lshlrev_b32 v1, 3, v0")
    for i in range(13):
        o(f"ds_read_b64 v[{64+2*i}:{65+2*i}], v1 offset:{A_STAGE + i*2048}")
    o(f"s_mul_i32 s31, s2, {CH*8}")
    for i in range(13):
        o(f"s_waitcnt lgkmcnt({12-i})")
        if i == 12:
            o("s_mov_b64 exec, s[24:25]")
        o(f"s_add_u32 s32, s31, {i*2048}")
        o(f"buffer_store_dwordx2 v[{64+2*i}:{65+2*i}], v1, s[20:23], s32 offen")
    o("s_endpgm")

    lab("A_frag")
    o(f"s_sub_u32 s3, s2, {NBK}")
    o("v_lshrrev_b32 v2, 6, v0")
    o("v_readfirstlane_b32 s26, v2")
    o("s_lshl_b32 s3, s3, 2")
    o("s_add_u32 s3, s3, s26")
    o("s_cmp_ge_u32 s3, 36")
    o("s_cbranch_scc1 A_end")
    o("s_load_dwordx2 s[34:35], s[0:1], 32")
    o("s_load_dwordx2 s[36:37], s[0:1], 40")
    o("s_load_dwordx2 s[38:39], s[0:1], 48")
    o("s_load_dwordx2 s[40:41], s[0:1], 56")
    o("s_load_dwordx2 s[42:43], s[0:1], 64")
    o("s_waitcnt lgkmcnt(0)")
    srd(20, 8, WS_SIZE)
    o("s_mov_b64 s[44:45], s[36:37]")
    o("s_mov_b32 s27, s3")
    o("s_cmp_ge_u32 s3, 8")
    o("s_cselect_b64 s[44:45], s[42:43], s[44:45]")
    o("s_cselect_b32 s28, 8, 0")
    o("s_sub_u32 s27, s3, s28")
    o("s_cmp_ge_u32 s3, 16")
    o("s_cselect_b64 s[44:45], s[38:39], s[44:45]")
    o("s_cselect_b32 s28, 16, s28")
    o("s_sub_u32 s27, s3, s28")
    o("s_cmp_ge_u32 s3, 20")
    o("s_cselect_b64 s[44:45], s[34:35], s[44:45]")
    o("s_cselect_b32 s28, 20, s28")
    o("s_sub_u32 s27, s3, s28")
    o("s_cmp_ge_u32 s3, 28")
    o("s_cselect_b64 s[44:45], s[40:41], s[44:45]")
    o("s_cselect_b32 s28, 28, s28")
    o("s_sub_u32 s27, s3, s28")
    srd(12, 44, 64 * 64 * 2)
    o("v_and_b32 v1, 63, v0")
    o("v_and_b32 v2, 15, v1")
    o("v_lshrrev_b32 v3, 4, v1")
    o("s_lshl_b32 s29, s3, 10")
    o(f"s_add_u32 s29, s29, {WS_FRAG}")
    o("v_lshlrev_b32 v4, 4, v1")
    o("s_cmp_eq_u32 s28, 16")
    o("s_cbranch_scc1 A_fragc")
    o("s_lshr_b32 s30, s27, 1")
    o("s_and_b32 s31, s27, 1")
    o("s_lshl_b32 s30, s30, 5")
    o("s_lshl_b32 s31, s31, 12")
    o("s_add_u32 s30, s30, s31")
    o("v_lshlrev_b32 v5, 10, v3")
    o("v_lshl_add_u32 v5, v2, 1, v5")
    for j in range(8):
        o(f"buffer_load_ushort v{8+j}, v5, s[12:15], s30 offen offset:{j*128}")
    o("s_waitcnt vmcnt(0)")
    for j in range(4):
        o(f"v_lshl_or_b32 v{16+j}, v{9+2*j}, 16, v{8+2*j}")
    o("buffer_store_dwordx4 v[16:19], v4, s[20:23], s29 offen")
    o("s_endpgm")
    lab("A_fragc")
    o("s_lshl_b32 s30, s27, 5")
    o("v_lshlrev_b32 v5, 9, v3")
    o("v_lshl_add_u32 v5, v2, 1, v5")
    for j in range(4):
        o(f"buffer_load_ushort v{8+j}, v5, s[12:15], s30 offen offset:{j*128}")
    o("s_waitcnt vmcnt(0)")
    for j in range(2):
        o(f"v_lshl_or_b32 v{16+j}, v{9+2*j}, 16, v{8+2*j}")
    o("v_lshlrev_b32 v4, 3, v1")
    o("buffer_store_dwordx2 v[16:17], v4, s[20:23], s29 offen")
    lab("A_end")
    o("s_endpgm")

CAP = 4096
C_REC = 0
C_ACC = C_REC + CAP * 8
C_XA = C_ACC + 112 * 512
C_XU = C_XA + 112 * 256
C_CNT = C_XU + 112 * 256
C_NOFF = C_CNT + 512
C_SC = C_NOFF + 512
C_TL = C_SC + 256
TLN = 384
C_LDS = C_TL + 8 * TLN * 4
WF = 64
SLOT = [136, 148, 160]
DG, DH, DEN, NUM, CXA = 172, 188, 204, 220, 236

def frag_load(first, cnt, dst):
    for k in range(cnt):
        o(f"s_add_u32 s40, s39, {(first+k)*1024}")
        o(f"buffer_load_dwordx4 v[{dst+4*k}:{dst+4*k+3}], v4, s[16:19], s40 offen")

def gen_main():
    lab(MAIN)
    o("s_load_dwordx2 s[4:5], s[0:1], 0")
    o("s_load_dwordx2 s[6:7], s[0:1], 8")
    o("s_load_dwordx2 s[8:9], s[0:1], 88")
    o("s_load_dwordx2 s[10:11], s[0:1], 72")
    o(f"s_cmp_ge_u32 s2, {NBK}")
    o("s_cbranch_scc1 C_end")
    o("s_waitcnt lgkmcnt(0)")
    stamp()
    srd(12, 4, N * 128)
    srd(24, 6, E * 32)
    srd(16, 8, WS_SIZE)
    srd(20, 10, N * 128)
    o(f"s_mul_i32 s3, s2, {NB}")
    o("v_and_b32 v3, 63, v0")
    o("v_and_b32 v1, 15, v0")
    o("v_bfe_u32 v2, v0, 4, 2")
    o("v_lshrrev_b32 v5, 6, v0")
    o("v_readfirstlane_b32 s38, v5")
    o("v_lshlrev_b32 v4, 4, v3")
    o(f"s_mov_b32 s39, {WS_FRAG}")
    o("s_cmp_ge_u32 s38, 7")
    o("s_cbranch_scc1 C_p0b")
    frag_load(20, 16, WF)
    o("s_lshl_b32 s41, s38, 4")
    o("s_add_u32 s41, s41, s3")
    o("v_add_u32 v6, s41, v1")
    o("v_lshlrev_b32 v6, 7, v6")
    o("v_lshl_add_u32 v6, v2, 4, v6")
    o("buffer_load_dwordx4 v[8:11], v6, s[12:15], 0 offen")
    o("buffer_load_dwordx4 v[12:15], v6, s[12:15], 0 offen offset:64")
    o("s_waitcnt vmcnt(0)")
    for nt in range(8):
        o(f"v_mfma_f32_16x16x32_bf16 v[{16+4*nt}:{19+4*nt}], v[8:11], v[{WF+8*nt}:{WF+8*nt+3}], 0")
    for nt in range(8):
        o(f"v_mfma_f32_16x16x32_bf16 v[{16+4*nt}:{19+4*nt}], v[12:15], v[{WF+8*nt+4}:{WF+8*nt+7}], v[{16+4*nt}:{19+4*nt}]")
    o("s_nop 7")
    o("s_nop 7")
    o("v_lshlrev_b32 v6, 10, v2")
    o("v_lshl_add_u32 v6, v1, 2, v6")
    o("s_lshl_b32 s41, s38, 12")
    o("v_add_u32 v6, s41, v6")
    for nt in range(8):
        base = C_XA if nt < 4 else C_XU
        for r in range(0, 4, 2):
            a = 16 + 4 * nt + r
            o(f"v_cvt_pk_bf16_f32 v7, v{a}, v{a+1}")
            o(f"v_lshlrev_b32 v{a}, 16, v7")
            o(f"v_and_b32 v{a+1}, 0xffff0000, v7")
            o(f"ds_write_b32 v6, v{a} offset:{base + (nt%4)*64 + r*256}")
            o(f"ds_write_b32 v6, v{a+1} offset:{base + (nt%4)*64 + (r+1)*256}")
    lab("C_p0b")
    frag_load(0, 16, WF)
    o("v_lshlrev_b32 v5, 3, v3")
    for k in range(4):
        o(f"s_add_u32 s40, s39, {(16+k)*1024}")
        o(f"buffer_load_dwordx2 v[{WF+64+2*k}:{WF+64+2*k+1}], v5, s[16:19], s40 offen")
    o("v_mov_b32 v8, 0")
    o("v_mov_b32 v9, 0")
    o("v_mov_b32 v10, 0")
    o("v_mov_b32 v11, 0")
    o("v_lshlrev_b32 v6, 4, v0")
    for k in range(7):
        o(f"ds_write_b128 v6, v[8:11] offset:{C_ACC + k*8192}")
    o("v_lshlrev_b32 v6, 2, v0")
    o("s_lshl_b32 s41, s2, 10")
    o(f"s_add_u32 s41, s41, {WS_OFF}")
    o("s_cmp_ge_u32 s38, 4")
    o("s_cbranch_scc1 C_p0c")
    o("buffer_load_dword v20, v6, s[16:19], s41 offen")
    o("buffer_load_dword v21, v6, s[16:19], s41 offen offset:1024")
    o("s_waitcnt vmcnt(0)")
    o("v_sub_u32 v21, v21, v20")
    lab("C_p0c")
    o("s_cmp_ge_u32 s38, 4")
    o("s_cbranch_scc0 C_p0d")
    o("v_mov_b32 v20, 0")
    o("v_mov_b32 v21, 0")
    lab("C_p0d")
    scan256(21, 22, 24, C_SC, 38, 42)
    o("v_mov_b32 v24, 0")
    o(f"ds_read_b128 v[24:27], v24 offset:{C_SC}")
    o("s_waitcnt lgkmcnt(0)")
    o("v_add_u32 v24, v24, v25")
    o("v_add_u32 v26, v26, v27")
    o("v_add_u32 v24, v24, v26")
    o("v_readfirstlane_b32 s47, v24")
    o(f"v_mul_u32_u24 v23, {CH*8}, v0")
    o("v_lshl_add_u32 v23, v20, 3, v23")
    o("s_mov_b32 s48, 0")
    stamp()
    lab("C_round")
    o("s_cmp_ge_u32 s38, 4")
    o("s_cbranch_scc1 C_cp_done")
    o("v_mov_b32 v28, 0")
    lab("C_cp_loop")
    o("v_cmp_lt_u32 vcc, v28, v21")
    o("s_cbranch_vccz C_cp_done")
    for u in range(4):
        o(f"v_add_u32 v{30+u}, {u}, v28")
        o(f"v_cmp_lt_u32 s[{50+2*u}:{51+2*u}], v{30+u}, v21")
        o(f"v_add_u32 v{30+u}, v{30+u}, v22")
        o(f"v_subrev_u32 v{30+u}, s48, v{30+u}")
        o(f"v_cmp_gt_u32 vcc, {CAP}, v{30+u}")
        o(f"s_and_b64 s[{50+2*u}:{51+2*u}], s[{50+2*u}:{51+2*u}], vcc")
        o(f"v_lshlrev_b32 v{30+u}, 3, v{30+u}")
        o(f"v_lshl_add_u32 v29, v28, 3, v23")
        o(f"s_mov_b64 exec, s[{50+2*u}:{51+2*u}]")
        o(f"buffer_load_dwordx2 v[{36+2*u}:{37+2*u}], v29, s[16:19], 0 offen offset:{8*u}")
        o("s_mov_b64 exec, -1")
    for u in range(4):
        o(f"s_waitcnt vmcnt({3-u})")
        o(f"s_mov_b64 exec, s[{50+2*u}:{51+2*u}]")
        o(f"ds_write_b64 v{30+u}, v[{36+2*u}:{37+2*u}] offset:{C_REC}")
        o("s_mov_b64 exec, -1")
    o("v_add_u32 v28, 4, v28")
    o("s_branch C_cp_loop")
    lab("C_cp_done")
    stamp()
    o("v_lshlrev_b32 v6, 2, v0")
    o("v_mov_b32 v7, 0")
    o("v_cmp_gt_u32 vcc, 128, v0")
    o("s_and_saveexec_b64 s[50:51], vcc")
    o(f"ds_write_b32 v6, v7 offset:{C_CNT}")
    o("s_mov_b64 exec, -1")
    o("s_waitcnt vmcnt(0) lgkmcnt(0)")
    o("s_barrier")
    o("s_sub_u32 s49, s47, s48")
    o(f"s_min_u32 s49, s49, {CAP}")
    o("v_lshlrev_b32 v6, 3, v0")
    o("v_mov_b32 v7, 1")
    for k in range(8):
        o(f"v_add_u32 v5, {512*k}, v0")
        o(f"v_cmp_gt_u32 s[{50+2*k}:{51+2*k}], s49, v5")
        o(f"s_mov_b64 exec, s[{50+2*k}:{51+2*k}]")
        o(f"ds_read_b64 v[{28+2*k}:{29+2*k}], v6 offset:{C_REC + 4096*k}")
        o("s_mov_b64 exec, -1")
    o("s_waitcnt lgkmcnt(0)")
    for k in range(8):
        o(f"v_lshrrev_b32 v5, 24, v{28+2*k}")
        o("v_lshlrev_b32 v5, 2, v5")
        o(f"s_mov_b64 exec, s[{50+2*k}:{51+2*k}]")
        o(f"ds_add_rtn_u32 v{44+k}, v5, v7 offset:{C_CNT}")
        o("s_mov_b64 exec, -1")
    o("s_waitcnt lgkmcnt(0)")
    o("s_barrier")
    o("s_cmp_lg_u32 s38, 0")
    o("s_cbranch_scc1 C_scan_done")
    o("v_lshlrev_b32 v6, 3, v0")
    o(f"ds_read_b64 v[8:9], v6 offset:{C_CNT}")
    o("s_waitcnt lgkmcnt(0)")
    o("v_add_u32 v10, v8, v9")
    o("v_mov_b32 v12, v10")
    wave_scan(12)
    o("v_sub_u32 v12, v12, v10")
    o("v_add_u32 v13, v12, v8")
    o(f"ds_write_b64 v6, v[12:13] offset:{C_NOFF}")
    o("s_waitcnt lgkmcnt(0)")
    lab("C_scan_done")
    o("s_barrier")
    for k in range(8):
        o(f"v_lshrrev_b32 v5, 24, v{28+2*k}")
        o("v_lshlrev_b32 v5, 2, v5")
        o(f"s_mov_b64 exec, s[{50+2*k}:{51+2*k}]")
        o(f"ds_read_b32 v{52+k}, v5 offset:{C_NOFF}")
        o("s_mov_b64 exec, -1")
    o("s_waitcnt lgkmcnt(0)")
    for k in range(8):
        o(f"v_add_u32 v5, v{52+k}, v{44+k}")
        o("v_lshlrev_b32 v5, 3, v5")
        o(f"s_mov_b64 exec, s[{50+2*k}:{51+2*k}]")
        o(f"ds_write_b64 v5, v[{28+2*k}:{29+2*k}] offset:{C_REC}")
        o("s_mov_b64 exec, -1")
    o("s_waitcnt lgkmcnt(0)")
    o("s_barrier")
    stamp()
    o("v_lshlrev_b32 v5, 3, v3")
    o("v_add_u32 v5, s38, v5")
    o(f"v_cmp_gt_u32 vcc, {NB}, v5")
    o("v_lshlrev_b32 v6, 2, v5")
    o("v_min_u32 v6, 508, v6")
    o(f"ds_read_b32 v8, v6 offset:{C_NOFF}")
    o(f"ds_read_b32 v9, v6 offset:{C_CNT}")
    o("s_waitcnt lgkmcnt(0)")
    o("v_cndmask_b32 v9, 0, v9, vcc")
    o("v_add_u32 v10, 15, v9")
    o("v_lshrrev_b32 v10, 4, v10")
    o("v_mov_b32 v11, v10")
    wave_scan(11)
    o("v_readlane_b32 s44, v11, 63")
    o("v_sub_u32 v11, v11, v10")
    o(f"s_mul_i32 s45, s38, {TLN*4}")
    o(f"s_add_u32 s45, s45, {C_TL}")
    o("v_lshlrev_b32 v11, 2, v11")
    o("v_add_u32 v11, s45, v11")
    o("v_mov_b32 v12, 0")
    o("v_lshlrev_b32 v13, 17, v5")
    lab("C_tl_loop")
    o("v_cmp_lt_u32 vcc, v12, v10")
    o("s_cbranch_vccz C_tl_done")
    o("s_and_saveexec_b64 s[50:51], vcc")
    o("v_lshlrev_b32 v14, 4, v12")
    o("v_sub_u32 v15, v9, v14")
    o("v_min_u32 v15, 16, v15")
    o("v_add_u32 v14, v14, v8")
    o("v_lshl_or_b32 v14, v15, 12, v14")
    o("v_or_b32 v14, v14, v13")
    o("v_cmp_eq_u32 vcc, 0, v12")
    o("v_cndmask_b32 v15, 0, 1, vcc")
    o("v_lshl_or_b32 v14, v15, 24, v14")
    o("v_add_u32 v15, 1, v12")
    o("v_cmp_eq_u32 vcc, v15, v10")
    o("v_cndmask_b32 v15, 0, 1, vcc")
    o("v_lshl_or_b32 v14, v15, 25, v14")
    o("ds_write_b32 v11, v14")
    o("v_add_u32 v11, 4, v11")
    o("v_add_u32 v12, 1, v12")
    o("s_mov_b64 exec, -1")
    o("s_branch C_tl_loop")
    lab("C_tl_done")
    o("s_waitcnt lgkmcnt(0)")
    stamp()
    for r in range(4):
        o(f"v_lshl_add_u32 v{16+r}, v2, 2, {r}")
    o("v_mov_b32 v58, v21")
    o("v_mov_b32 v59, v22")
    o("v_mov_b32 v60, v23")
    o(f"v_lshlrev_b32 v20, 2, v1")
    o(f"v_add_u32 v20, {C_XA}, v20")
    o(f"v_lshlrev_b32 v21, 2, v1")
    o(f"v_add_u32 v21, {C_ACC}, v21")
    o("v_lshlrev_b32 v22, 4, v2")
    o("v_lshlrev_b32 v23, 3, v2")
    o("v_mov_b32 v24, s45")
    for k in range(16):
        o(f"v_mov_b32 v{DEN+k}, 0")
        o(f"v_mov_b32 v{NUM+k}, 0")
    o("s_cmp_eq_u32 s44, 0")
    o("s_cbranch_scc1 C_loop_end")
    o("ds_read_b32 v25, v24")
    o("v_add_u32 v24, 4, v24")
    o("s_mov_b32 s46, 0")
    o("s_mov_b32 s88, 0")

    def rec_read(sd):
        o(f"s_bfe_u32 s63, s{sd}, 0x5000c")
        o(f"s_and_b32 s64, s{sd}, 0xfff")
        o("s_sub_u32 s63, s63, 1")
        o("v_min_u32 v26, s63, v1")
        o("v_add_u32 v26, s64, v26")
        o("v_lshlrev_b32 v26, 3, v26")
        o(f"ds_read_b64 v[26:27], v26 offset:{C_REC}")

    def prefetch(slot):
        b = SLOT[slot]
        o("s_waitcnt lgkmcnt(0)")
        o("v_lshl_add_u32 v29, v27, 7, v22")
        o("v_and_b32 v30, 0xfffff, v26")
        o("v_lshl_add_u32 v30, v30, 5, v23")
        o("v_readfirstlane_b32 s68, v25")
        o(f"buffer_load_dwordx4 v[{b}:{b+3}], v29, s[12:15], 0 offen")
        o(f"buffer_load_dwordx4 v[{b+4}:{b+7}], v29, s[12:15], 0 offen offset:64")
        o(f"buffer_load_dwordx2 v[{b+8}:{b+9}], v30, s[24:27], 0 offen")
        rec_read(67)
        o("ds_read_b32 v25, v24")
        o("v_add_u32 v24, 4, v24")

    cnt_lbl = [0]
    def compute(slot):
        b = SLOT[slot]
        u = cnt_lbl[0]; cnt_lbl[0] += 1
        o("s_bitcmp1_b32 s60, 24")
        o(f"s_cbranch_scc0 C_nf{u}")
        o("s_bfe_u32 s65, s60, 0x70011")
        o("s_lshl_b32 s65, s65, 8")
        o("v_add_u32 v28, s65, v20")
        for nt in range(4):
            for r in range(4):
                o(f"ds_read_b32 v{CXA+4*nt+r}, v28 offset:{64*nt}")
        o("s_waitcnt lgkmcnt(0)")
        lab(f"C_nf{u}")
        o("s_bfe_u32 s66, s60, 0x5000c")
        for r in range(4):
            o(f"v_cmp_gt_u32 s[{50+2*r}:{51+2*r}], s66, v{16+r}")
        o("s_waitcnt vmcnt(6)")
        if DBG:
            o("s_memtime s[84:85]")
            o("s_waitcnt lgkmcnt(0)")
        for nt in range(4):
            o(f"v_mfma_f32_16x16x16_bf16 v[{DG+4*nt}:{DG+4*nt+3}], v[{b+8}:{b+9}], v[{WF+64+2*nt}:{WF+64+2*nt+1}], v[{CXA+4*nt}:{CXA+4*nt+3}]")
        for nt in range(4):
            o(f"v_mfma_f32_16x16x32_bf16 v[{DH+4*nt}:{DH+4*nt+3}], v[{b}:{b+3}], v[{WF+32+8*nt}:{WF+32+8*nt+3}], 0")
        for nt in range(4):
            o(f"v_mfma_f32_16x16x32_bf16 v[{DG+4*nt}:{DG+4*nt+3}], v[{b}:{b+3}], v[{WF+8*nt}:{WF+8*nt+3}], v[{DG+4*nt}:{DG+4*nt+3}]")
        for nt in range(4):
            o(f"v_mfma_f32_16x16x32_bf16 v[{DH+4*nt}:{DH+4*nt+3}], v[{b+4}:{b+7}], v[{WF+32+8*nt+4}:{WF+32+8*nt+7}], v[{DH+4*nt}:{DH+4*nt+3}]")
        for nt in range(4):
            o(f"v_mfma_f32_16x16x32_bf16 v[{DG+4*nt}:{DG+4*nt+3}], v[{b+4}:{b+7}], v[{WF+8*nt+4}:{WF+8*nt+7}], v[{DG+4*nt}:{DG+4*nt+3}]")
        o("s_nop 7")
        for k in range(16):
            o(f"v_mul_f32 v{DG+k}, 0xbfb8aa3b, v{DG+k}")
        for k in range(16):
            o(f"v_exp_f32 v{DG+k}, v{DG+k}")
        for k in range(16):
            o(f"v_add_f32 v{DG+k}, 1.0, v{DG+k}")
        for k in range(16):
            o(f"v_rcp_f32 v{DG+k}, v{DG+k}")
        o("s_nop 0")
        if DBG:
            o("v_mov_b32 v62, v{DG}".format(DG=DG))
            o("s_memtime s[86:87]")
            o("s_waitcnt lgkmcnt(0)")
            o("s_sub_u32 s86, s86, s84")
            o("s_add_u32 s88, s88, s86")
        for r in range(4):
            o(f"s_mov_b64 exec, s[{50+2*r}:{51+2*r}]")
            for nt in range(4):
                k = 4 * nt + r
                o(f"v_add_f32 v{DEN+k}, v{DEN+k}, v{DG+k}")
                o(f"v_fmac_f32 v{NUM+k}, v{DG+k}, v{DH+k}")
        o("s_mov_b64 exec, -1")
        o("s_bitcmp1_b32 s60, 25")
        o(f"s_cbranch_scc0 C_nl{u}")
        o("s_bfe_u32 s65, s60, 0x70011")
        o("s_lshl_b32 s65, s65, 9")
        o("v_add_u32 v28, s65, v21")
        vals = [base + 4 * nt for base in (DEN, NUM) for nt in range(4)]
        offs = [64 * nt + (256 if base == NUM else 0) for base in (DEN, NUM) for nt in range(4)]
        for i, a in enumerate(vals):
            o(f"ds_read_b32 v{30+i}, v28 offset:{offs[i]}")
        for a in vals:
            o(f"v_add_f32 v{a}, v{a}, v{a+1}")
            o(f"v_add_f32 v{a+2}, v{a+2}, v{a+3}")
        for a in vals:
            o(f"v_add_f32 v{a}, v{a}, v{a+2}")
        for a in vals:
            o(f"v_mov_b32 v{a+1}, v{a}")
        o("s_nop 1")
        for a in vals:
            o(f"v_permlane32_swap_b32 v{a}, v{a+1}")
        for a in vals:
            o(f"v_add_f32 v{a}, v{a}, v{a+1}")
        for a in vals:
            o(f"v_mov_b32 v{a+1}, v{a}")
        o("s_nop 1")
        for a in vals:
            o(f"v_permlane16_swap_b32 v{a}, v{a+1}")
        o("s_waitcnt lgkmcnt(0)")
        for i, a in enumerate(vals):
            o(f"v_add_f32 v{a}, v{a}, v{a+1}")
            o(f"v_add_f32 v{a}, v{a}, v{30+i}")
        for i, a in enumerate(vals):
            o(f"ds_write_b32 v28, v{a} offset:{offs[i]}")
        for k in range(16):
            o(f"v_mov_b32 v{DEN+k}, 0")
            o(f"v_mov_b32 v{NUM+k}, 0")
        lab(f"C_nl{u}")

    o("s_waitcnt lgkmcnt(0)")
    o("v_readfirstlane_b32 s62, v25")
    o("ds_read_b32 v25, v24")
    o("v_add_u32 v24, 4, v24")
    rec_read(62)
    o("s_waitcnt lgkmcnt(0)")
    o("v_readfirstlane_b32 s67, v25")
    o("ds_read_b32 v25, v24")
    o("v_add_u32 v24, 4, v24")
    for pre in range(2):
        prefetch(pre)
        o("s_mov_b32 s60, s61")
        o("s_mov_b32 s61, s62")
        o("s_mov_b32 s62, s67")
        o("s_mov_b32 s67, s68")
    lab("C_loop")
    for u in range(3):
        prefetch((u + 2) % 3)
        compute(u)
        o("s_mov_b32 s60, s61")
        o("s_mov_b32 s61, s62")
        o("s_mov_b32 s62, s67")
        o("s_mov_b32 s67, s68")
        o("s_add_u32 s46, s46, 1")
        o("s_cmp_ge_u32 s46, s44")
        o("s_cbranch_scc1 C_loop_end")
    o("s_branch C_loop")
    lab("C_loop_end")
    o("s_waitcnt vmcnt(0) lgkmcnt(0)")
    stamp()
    o("s_barrier")
    o("v_mov_b32 v21, v58")
    o("v_mov_b32 v22, v59")
    o("v_mov_b32 v23, v60")
    o(f"s_add_u32 s48, s48, {CAP}")
    o("s_cmp_lt_u32 s48, s47")
    o("s_cbranch_scc1 C_round")
    o("v_mov_b32 v40, 0x358637bd")
    o(f"s_mov_b32 s54, {N}")
    for k in range(7):
        R = 64 + 10 * k
        o(f"v_add_u32 v5, {512*k}, v0")
        o("v_lshrrev_b32 v6, 5, v5")
        o("v_and_b32 v7, 31, v5")
        o("v_add_u32 v8, s3, v6")
        o(f"v_cmp_gt_u32 vcc, {NB}, v6")
        o("v_cmp_gt_u32 s[56:57], s54, v8")
        o(f"s_and_b64 s[{84+2*k}:{85+2*k}], vcc, s[56:57]")
        o(f"s_mov_b64 exec, s[{84+2*k}:{85+2*k}]")
        o("v_lshlrev_b32 v9, 9, v6")
        o("v_lshl_add_u32 v9, v7, 3, v9")
        o(f"ds_read_b64 v[{R}:{R+1}], v9 offset:{C_ACC}")
        o(f"ds_read_b64 v[{R+2}:{R+3}], v9 offset:{C_ACC+256}")
        o("v_lshlrev_b32 v9, 8, v6")
        o("v_lshl_add_u32 v9, v7, 3, v9")
        o(f"ds_read_b64 v[{R+4}:{R+5}], v9 offset:{C_XU}")
        o(f"v_lshlrev_b32 v{R+7}, 7, v8")
        o(f"v_lshl_add_u32 v{R+7}, v7, 2, v{R+7}")
        o(f"buffer_load_dword v{R+6}, v{R+7}, s[12:15], 0 offen")
        o("s_mov_b64 exec, -1")
    o("s_waitcnt vmcnt(0) lgkmcnt(0)")
    for k in range(7):
        R = 64 + 10 * k
        o(f"s_mov_b64 exec, s[{84+2*k}:{85+2*k}]")
        for h in range(2):
            o(f"v_add_f32 v{R+h}, v40, v{R+h}")
            o(f"v_rcp_f32 v{R+h}, v{R+h}")
            o("s_nop 0")
            o(f"v_fma_f32 v{R+4+h}, v{R+2+h}, v{R+h}, v{R+4+h}")
        o(f"v_cvt_pk_bf16_f32 v{R+4}, v{R+4}, v{R+5}")
        o(f"v_lshlrev_b32 v{R}, 16, v{R+4}")
        o(f"v_and_b32 v{R+1}, 0xffff0000, v{R+4}")
        o(f"v_max_f32 v{R}, 0, v{R}")
        o(f"v_max_f32 v{R+1}, 0, v{R+1}")
        o(f"v_lshlrev_b32 v{R+2}, 16, v{R+6}")
        o(f"v_and_b32 v{R+3}, 0xffff0000, v{R+6}")
        o(f"v_add_f32 v{R}, v{R}, v{R+2}")
        o(f"v_add_f32 v{R+1}, v{R+1}, v{R+3}")
        o(f"v_cvt_pk_bf16_f32 v{R}, v{R}, v{R+1}")
        o(f"buffer_store_dword v{R}, v{R+7}, s[20:23], 0 offen")
    o("s_mov_b64 exec, -1")
    if DBG:
        stamp()
        o("s_load_dwordx2 s[4:5], s[0:1], 80")
        o("s_waitcnt lgkmcnt(0)")
        srd(28, 4, 256)
        o("s_cmp_lg_u32 s2, 7")
        o("s_cbranch_scc1 C_end")
        o("v_lshlrev_b32 v5, 2, v0")
        o("s_add_u32 s86, s88, s70")
        o("s_add_u32 s84, s44, s70")
        for k in range(1, 9):
            o(f"s_sub_u32 s54, s{70+2*k}, s70")
            o("v_mov_b32 v6, s54")
            o(f"v_cmp_eq_u32 vcc, {k}, v0")
            o("s_and_saveexec_b64 s[52:53], vcc")
            o("buffer_store_dword v6, v5, s[28:31], 0 offen")
            o("s_mov_b64 exec, -1")
    lab("C_end")
    o("s_endpgm")

def kd(name, vg, sg):
    return f""".amdhsa_kernel {name}
  .amdhsa_next_free_vgpr {vg}
  .amdhsa_next_free_sgpr {sg}
  .amdhsa_accum_offset {vg}
  .amdhsa_group_segment_fixed_size 0
  .amdhsa_kernarg_size 96
  .amdhsa_user_sgpr_count 2
  .amdhsa_user_sgpr_kernarg_segment_ptr 1
  .amdhsa_system_sgpr_workgroup_id_x 1
.end_amdhsa_kernel
"""

def main():
    hdr = open("standalone__edge_featured_mpnn_gatedgcn__graph.s.ref").read().split("\n")
    head = [l for l in hdr if l.startswith(";") and "@launch" not in l and "Override" not in l and "grid=ceil" not in l]
    out = head[:]
    out.append(f"; @launch kernel={PART} grid=({NBK+9},1,1) block=(256,1,1) lds=27392")
    out.append(f"; @launch kernel={MAIN} grid=({NBK},1,1) block=(512,1,1) lds={C_LDS}")
    out.append('.amdgcn_target "amdgcn-amd-amdhsa--gfx950"')
    out.append(".text")
    global L
    for name, fn in ((PART, gen_part), (MAIN, gen_main)):
        L = []
        out.append(f".globl {name}")
        out.append(".p2align 8")
        out.append(f".type {name},@function")
        fn()
        out += L
    out.append('.section .rodata,"a"')
    out.append(".p2align 6")
    out.append(kd(PART, 96, 64))
    out.append(".p2align 6")
    out.append(kd(MAIN, 256, 100))
    open("standalone__edge_featured_mpnn_gatedgcn__graph.s", "w").write("\n".join(out) + "\n")
    print("LDS C:", C_LDS)

main()
```
